```python
import torch

def _softmax(x, axis=-1):
    return torch.softmax(x, dim=axis)
def _gelu(x):
    return torch.nn.functional.gelu(x, approximate="tanh")
def _silu(x):
    return torch.nn.functional.silu(x)
def _sigmoid(x):
    return torch.sigmoid(x)
def _layernorm(x, axis=-1, eps=1e-5):
    m = x.mean(dim=axis, keepdim=True)
    v = x.var(dim=axis, keepdim=True, unbiased=False)
    return (x - m) / torch.sqrt(v + eps)
def _scatter_add(tgt, idx, src, axis=0):
    return tgt.clone().index_add_(axis, idx, src)
def _segment_sum(src, seg, n):
    out = torch.zeros((n,) + src.shape[1:], dtype=src.dtype)
    return out.index_add_(0, seg, src)
def _pad(x, pw):
    flat = tuple(v for pair in reversed(pw) for v in pair)
    return torch.nn.functional.pad(x, flat)

kernel_name = 'gated_mix__compressed_kv_cla__dense_activation_gelu__prompt'

def setup_inputs():

    _w = (lambda a: (lambda t: t.to(torch.bfloat16) if t.is_floating_point() else t)(torch.as_tensor(a)))
    def _A_setup():
        B, H, Sq, Sk, D, M = 1, 32, 2048, 2048, 128, 640
        Dc = 4 * D
        return {
            "x": _w((lambda *s: torch.randn(*s, dtype=torch.bfloat16) * 0.05)(B, Sq, M)),
            "c_kv": _w((lambda *s: torch.randn(*s, dtype=torch.bfloat16) * 0.4)(B, Sk, Dc)),
            "w_q": _w((lambda *s: torch.randn(*s, dtype=torch.bfloat16) * 6.4)(M, H, D) * (M ** -0.5)),
            "w_uk": _w((lambda *s: torch.randn(*s, dtype=torch.bfloat16) * 6.4)(Dc, H, D) * (Dc ** -0.5)),
            "w_uv": _w((lambda *s: torch.randn(*s, dtype=torch.bfloat16) * 0.4)(Dc, H, D) * (Dc ** -0.5)),
            "w_o": _w((lambda *s: torch.randn(*s, dtype=torch.bfloat16) * 0.4)(H, D, M) * ((H * D) ** -0.5)),
        }
    _A_in = _A_setup()

    def _B_setup():
        B, S, D, F = 1, 2048, 640, 1728
        return {
            "x": _w((lambda *s: torch.randn(*s, dtype=torch.bfloat16) * 0.05)(B, S, D)),
            "w1": _w((lambda *s: torch.randn(*s, dtype=torch.bfloat16) * 3.2)(D, F) * (D ** -0.5)),
            "b1": _w((lambda *s: torch.randn(*s, dtype=torch.bfloat16) * 3.2)(F) * 0.01),
            "w2": _w((lambda *s: torch.randn(*s, dtype=torch.bfloat16) * 0.4)(F, D) * (F ** -0.5)),
            "b2": _w((lambda *s: torch.randn(*s, dtype=torch.bfloat16) * 0.8)(D) * 0.01),
        }
    _B_in = _B_setup()

    return {
        "A_x": _A_in["x"],
        "A_c_kv": _A_in["c_kv"],
        "A_w_q": _A_in["w_q"],
        "A_w_uk": _A_in["w_uk"],
        "A_w_uv": _A_in["w_uv"],
        "A_w_o": _A_in["w_o"],
        "B_x": _B_in["x"],
        "B_w1": _B_in["w1"],
        "B_b1": _B_in["b1"],
        "B_w2": _B_in["w2"],
        "B_b2": _B_in["b2"],
        "gate_w": _w((lambda *s: torch.randn(*s, dtype=torch.bfloat16) * 0.05)(640) * 16.0),
    }

def reference(A_x, A_c_kv, A_w_q, A_w_uk, A_w_uv, A_w_o, B_x, B_w1, B_b1, B_w2, B_b2, gate_w):
    def _A_ref(x, c_kv, w_q, w_uk, w_uv, w_o):
        B, Sq, M = x.shape[0], x.shape[1], x.shape[2]
        Sk = c_kv.shape[1]
        H, D = w_q.shape[1], w_q.shape[2]
        q = torch.einsum("bqm,mhd->bhqd", x, w_q)
        k = torch.einsum("bkc,chd->bhkd", c_kv, w_uk)
        v = torch.einsum("bkc,chd->bhkd", c_kv, w_uv)
        scores = torch.einsum("bhqd,bhkd->bhqk", q, k) * (D ** -0.5)
        off = Sk - Sq
        qi = torch.arange(Sq)[:, None]
        kj = torch.arange(Sk)[None, :]
        cmask = kj <= (qi + off)
        scores = torch.where(cmask[None, None], scores, -1e9)
        p = _softmax(scores, axis=-1)
        ctx = torch.einsum("bhqk,bhkd->bhqd", p, v)
        return torch.einsum("bhqd,hdm->bqm", ctx, w_o)

    def _B_ref(x, w1, b1, w2, b2):
        h = torch.einsum("bsd,df->bsf", x, w1) + b1
        h = _gelu(h)
        return torch.einsum("bsf,fd->bsd", h, w2) + b2

    x = A_x
    g = _sigmoid((x * gate_w).sum(-1, keepdims=True))
    a = _A_ref(x, A_c_kv, A_w_q, A_w_uk, A_w_uv, A_w_o)
    b = _B_ref(x, B_w1, B_b1, B_w2, B_b2)
    return g * a + (1 - g) * b
```

```python
import re

class Asm:
    def __init__(self):
        self.lines = []
    def __call__(self, s):
        if isinstance(s, (list, tuple)):
            for x in s: self(x)
            return
        for ln in s.split("\n"):
            ln = ln.strip()
            if ln: self.lines.append(ln)
    def label(self, name): self.lines.append(name + ":")
    def text(self):
        out = []
        for ln in self.lines:
            if ln.endswith(":") or ln.startswith("."): out.append(ln)
            else: out.append("  " + ln)
        return "\n".join(out) + "\n"

def R(kind, n, cnt=1):
    return f"{kind}{n}" if cnt == 1 else f"{kind}[{n}:{n+cnt-1}]"
def v(n, cnt=1): return R("v", n, cnt)
def a(n, cnt=1): return R("a", n, cnt)
def s(n, cnt=1): return R("s", n, cnt)

class Reg:
    def __init__(self, kind, n): self.kind, self.n = kind, n
    def r(self, off=0, cnt=1): return R(self.kind, self.n + off, cnt)
    def __add__(self, k): return Reg(self.kind, self.n + k)
    def __repr__(self): return f"{self.kind}{self.n}"

def mfma(d, A, B, c=None):
    cs = d.r(0, 4) if c is None else ("0" if c == 0 else c.r(0, 4))
    return f"v_mfma_f32_16x16x32_bf16 {d.r(0,4)}, {A.r(0,4)}, {B.r(0,4)}, {cs}"

def is_scalar(ins):
    return ins.startswith("s_")
def is_mem(ins):
    return ins.startswith(("ds_", "buffer_", "global_"))
def is_trans(ins):
    return ins.startswith(("v_exp_f32", "v_rcp_f32", "v_log_f32", "v_rsq_f32", "v_sqrt_f32"))

def weave(mf, gaps):
    out = []
    for m, g in zip(mf, gaps):
        out.append(m); out.extend(g)
    return out

def gap_cost(g):
    t = 4
    prev_valu = False
    for i, ins in enumerate(g):
        if is_scalar(ins):
            t += 4; prev_valu = False
        else:
            t = max(t, 8)
            if is_mem(ins) and prev_valu: t += 8
            t += 8 if is_trans(ins) else 4
            prev_valu = not is_mem(ins)
    return max(16, t)

_reg = re.compile(r"\b([vas])(\d+)\b|\b([vas])\[(\d+):(\d+)\]")
def regs_of(op):
    out = []
    for m in _reg.finditer(op):
        if m.group(1): out.append((m.group(1), int(m.group(2))))
        else: out.extend((m.group(3), i) for i in range(int(m.group(4)), int(m.group(5)) + 1))
    if re.search(r"\bvcc\b", op): out.append(("s", "vcc"))
    if re.search(r"\bm0\b", op): out.append(("s", "m0"))
    if re.search(r"\bexec\b", op): out.append(("s", "exec"))
    return out

def split_ops(rest):
    ops, depth, cur = [], 0, ""
    for ch in rest:
        if ch in "[(": depth += 1
        if ch in "])": depth -= 1
        if ch == "," and depth == 0: ops.append(cur.strip()); cur = ""
        else: cur += ch
    if cur.strip(): ops.append(cur.strip())
    return ops

class Ins:
    def __init__(self, text):
        self.text = text
        t = text.split(";")[0].strip()
        p = t.split(None, 1)
        self.mn = p[0]; ops = split_ops(p[1]) if len(p) > 1 else []
        self.ops = ops
        mn = self.mn
        self.kind = None; self.w = []; self.r = []; self.srcc = []
        self.lds_dma = False
        if mn.startswith(("v_mfma", "v_smfmac")):
            self.kind = "mfma"
            self.w = regs_of(ops[0]); self.ra = regs_of(ops[1]) + regs_of(ops[2])
            if mn.startswith("v_smfmac"):
                self.srcc = regs_of(ops[0]); self.ra += regs_of(ops[3])
            else:
                self.srcc = regs_of(ops[3])
            self.r = self.ra + self.srcc
            self.passes = 8 if "32x32" in mn else 4
        elif mn.startswith("v_"):
            self.kind = "valu"
            if mn.startswith("v_nop"): return
            nd = 2 if mn.startswith(("v_add_co", "v_addc_co", "v_sub_co", "v_div_scale")) else 1
            for o in ops[:nd]: self.w += regs_of(o)
            for o in ops[nd:]: self.r += regs_of(o)
            if mn.startswith(("v_fmac", "v_dot2c", "v_pk_fmac", "v_writelane")): self.r += regs_of(ops[0])
            if mn.startswith(("v_permlane32_swap", "v_permlane16_swap", "v_swap")):
                self.r += regs_of(ops[0]); self.w += regs_of(ops[1])
            if "dpp" in t or "row_" in t or "quad_perm" in t: self.dpp = True
        elif mn.startswith("ds_"):
            self.kind = "ds"
            if mn.startswith(("ds_read", "ds_bpermute", "ds_permute", "ds_swizzle")):
                self.w = regs_of(ops[0])
                for o in ops[1:]: self.r += regs_of(o)
            else:
                for o in ops: self.r += regs_of(o)
        elif mn.startswith(("buffer_", "global_")):
            self.kind = "vmem"
            if mn.startswith(("buffer_inv", "buffer_wbl2")): return
            if re.search(r"\blds\b", t):
                self.lds_dma = True
                for o in ops: self.r += regs_of(o)
                self.r.append(("s", "m0"))
            elif "load" in mn:
                self.w = regs_of(ops[0])
                for o in ops[1:]: self.r += regs_of(o)
            elif "atomic" in mn and re.search(r"\bsc0\b", t) and mn.startswith("buffer"):
                self.w = regs_of(ops[0])
                for o in ops: self.r += regs_of(o)
            else:
                for o in ops: self.r += regs_of(o)
                self.store_data = regs_of(ops[0] if mn.startswith("buffer") else ops[1])
        elif mn.startswith("s_"):
            self.kind = "salu"
            if mn.startswith(("s_load", "s_memtime", "s_memrealtime", "s_buffer_load")):
                self.kind = "smem"
                self.w = regs_of(ops[0])
                for o in ops[1:]: self.r += regs_of(o)
            elif mn.startswith(("s_waitcnt", "s_nop", "s_barrier", "s_branch", "s_cbranch", "s_endpgm", "s_setprio", "s_sleep")):
                pass
            elif mn.startswith(("s_cmp", "s_bitcmp")):
                for o in ops: self.r += regs_of(o)
            else:
                self.w = regs_of(ops[0])
                for o in ops[1:]: self.r += regs_of(o)
                if mn.startswith(("s_addk", "s_mulk")): self.r += regs_of(ops[0])
        else:
            raise ValueError("unknown instruction " + text)
    def states(self):
        if self.mn == "s_nop": return int(self.ops[0], 0) + 1
        return 1

def check_stream(lines, name="", verbose=True):
    ins = [Ins(l) for l in lines if not (l.endswith(":") or l.startswith("."))]
    probs = []
    def P(i, msg): probs.append(f"[{name}] #{i} '{ins[i].text}': {msg}")
    pos = []; p = 0
    for x in ins: pos.append(p); p += x.states()
    for i, c in enumerate(ins):
        rs, ws = set(c.r), set(c.w)
        for j in range(i - 1, max(-1, i - 24), -1):
            pr = ins[j]
            dist = pos[i] - pos[j] - pr.states()
            if dist >= 20: break
            pw = set(pr.w)
            if pr.kind == "mfma":
                n = pr.passes
                if c.kind == "mfma":
                    if pw & set(c.ra) and dist < n + 4: P(i, f"mfma D->A/B dist {dist} (#{j})")
                    ov = pw & set(c.srcc)
                    if ov and not (set(c.srcc) == pw and c.passes == n and c.mn == pr.mn) and dist < n + 2: P(i, f"mfma D->C overlap dist {dist} (#{j})")
                    if (pw & ws) and not ov and dist < n + 2: P(i, f"mfma WAW dist {dist} (#{j})")
                elif c.kind in ("valu", "ds", "vmem"):
                    if (pw & (rs | ws)) and dist < n + 4: P(i, f"mfma D->use dist {dist} (#{j})")
                    if c.kind == "valu" and (set(pr.srcc) & ws) and dist < n - 1: P(i, f"mfma C WAR dist {dist} (#{j})")
            if pr.kind == "valu":
                pv = {x for x in pw if x[0] in "va"}; ps = {x for x in pw if x[0] == "s"}
                if c.kind == "mfma" and (pv & rs) and dist < 2: P(i, f"valu->mfma dist {dist} (#{j})")
                if c.kind == "mfma" and ("s", "exec") in pw and dist < 4: P(i, "exec->mfma")
                if is_trans(pr.mn) and c.kind == "valu" and not is_trans(c.mn) and (pv & rs) and dist < 1: P(i, f"trans->valu (#{j})")
                if c.kind == "valu" and c.mn.startswith(("v_readfirstlane", "v_readlane")) and (pv & rs) and dist < 1: P(i, "valu->readlane")
                if c.kind == "valu" and c.mn.startswith("v_permlane") and (pv & rs) and dist < 2: P(i, "valu->permlane")
                if c.kind == "valu" and getattr(c, "dpp", False) and (pv & rs) and dist < 2: P(i, "valu->dpp")
                if c.kind == "valu" and (ps & rs) and dist < 2: P(i, f"valu sgpr->valu dist {dist}")
                if c.kind == "vmem" and (ps & rs) and dist < 5: P(i, f"valu sgpr->vmem dist {dist}")
            if pr.kind == "salu" and ("s", "m0") in pw and c.lds_dma and dist < 1: P(i, "m0->dma")
            if pr.kind == "vmem" and len(getattr(pr, "store_data", [])) >= 3:
                if (set(pr.store_data) & ws) and dist < (2 if c.kind in ("valu", "mfma") else 1): P(i, f"store data WAR dist {dist}")
    vm, lg = [], []
    for i, c in enumerate(ins):
        if c.mn == "s_waitcnt":
            t = c.text
            m = re.search(r"vmcnt\((\d+)\)", t)
            if m:
                n = int(m.group(1)); vm = vm[len(vm) - n:] if n < len(vm) and n > 0 else ([] if n == 0 else vm)
            m = re.search(r"lgkmcnt\((\d+)\)", t)
            if m:
                n = int(m.group(1))
                if n > 0 and any(ins[j].kind == "smem" for j, _ in lg): P(i, "counted lgkmcnt with smem outstanding")
                lg = lg[len(lg) - n:] if n < len(lg) and n > 0 else ([] if n == 0 else lg)
            continue
        touched = set(c.r) | set(c.w)
        for lst, nm in ((vm, "vmcnt"), (lg, "lgkmcnt")):
            for j, d in lst:
                if d & touched:
                    if (d & set(c.r)) or c.kind != ins[j].kind: P(i, f"uses result of #{j} '{ins[j].text}' before {nm} wait")
        if c.kind == "vmem":
            vm.append((i, set(c.w)))
            if len(vm) > 63: P(i, "vmcnt overflow")
        if c.kind in ("ds", "smem"):
            lg.append((i, set(c.w)))
    if verbose:
        for q in probs[:40]: print(q)
        if len(probs) > 40: print("...", len(probs), "problems")
    return probs
```

```python
from common import *
from p1b import S_ROW, S_RO, V_L16, QDST

RING = 4
DIST = RING - 2
V_RA, V_RB, V_IDX = 5, 6, 7
V_TMP = 8
S_RD, S_WR, S_SRC, S_CNT, S_W8 = 78, 79, 100, 101, 63
S0, S1, L0, L1 = 0, 1, 2, 3
def O(q, db): return Reg("v", 16 + 32 * q + 4 * db)
def SB(b): return Reg("v", 144 + 8 * b)
def Q(q, ds): return Reg("v", QDST + 16 * q + 4 * ds)
def PB(b): return Reg("v", 240 + 4 * b)
def KF(set_, f): return Reg("a", 32 * set_ + 4 * f)
def VF(set_, f): return Reg("a", 64 + 32 * set_ + 4 * f)
def LS(pair): return Reg("a", 128 + 4 * pair)
SEL_BOTH, SEL_HI = Reg("a", 136), Reg("a", 140)
def MASK(par): return Reg("a", 144 + 8 * par)

class G:
    def __init__(self, q, u, masked=False, sb=None, pb=None, sumsel=None, reads=(), pre=(), sc=()):
        self.q, self.u, self.masked = q, u, masked
        self.sb = q if sb is None else sb
        self.pb = q if pb is None else pb
        self.sumsel = sumsel
        self.reads = list(reads)
        self.valu = list(pre)
        self.events = list(sc)
def rd(kind, u, f0=0, f1=8): return [(kind, u, f) for f in range(f0, f1)]

def read_ins(kind, u, f):
    if kind == "V":
        reg, off, dst = (V_RA, 0, VF(0, f)) if u % 2 == 0 else (V_RB, 16384, VF(1, f))
    else:
        reg, off, dst = (V_RA, 8192, KF(1, f)) if u % 2 == 1 else (V_RB, 24576, KF(0, f))
    return f"ds_read_b128 {dst.r(0,4)}, v{reg} offset:{off + 1024*f}"

def dma_list():
    out = []
    for i in range(8):
        sc = []
        if i == 0: sc = [f"s_add_u32 m0, s{S_WR}, s{S_W8}"]
        if i == 4: sc = [f"s_add_u32 m0, m0, 4096", f"s_add_u32 s{S_SRC}, s{S_SRC}, 4096"]
        out.append((sc, f"buffer_load_dwordx4 v{V_L16}, s[{SRD_A}:{SRD_A+3}], s{S_SRC} offen offset:{(i%4)*1024} lds"))
    post = [f"s_add_u32 s{S_SRC}, s{S_SRC}, {32768 - 4096}"] + ring_adv(S_WR)
    return out, post
def ring_adv(r):
    if RING == 4: return [f"s_add_u32 s{r}, s{r}, 32768", f"s_and_b32 s{r}, s{r}, 0x1ffff"]
    return [f"s_add_u32 s{r}, s{r}, 32768", f"s_cmp_eq_u32 s{r}, {RING*32768}", f"s_cselect_b32 s{r}, 0, s{r}"]

def mask_load(sb, par):
    return [f"v_accvgpr_read_b32 {SB(sb).r(k)}, {MASK(par).r(k)}" for k in range(8)]

PREV = lambda: [G(L0, -1), G(L1, -1, sumsel="both")]

def build(groups, drain=False, tail_sc=()):
    seq = PREV() + groups
    n = len(groups)
    mf, gaps = [], []
    def add(m):
        mf.append(m); gaps.append({"s": [], "m": [], "v": []}); return gaps[-1]
    pend_sc = []
    gstart = []
    for gi in range(n):
        cur = seq[gi + 2] if gi + 2 < len(seq) else None
        e = seq[gi + 1] if gi + 1 < len(seq) else None
        pv = seq[gi]
        if cur is not None and cur.q is None: qk = None
        else: qk = cur
        if e is not None and e.q is None: e = None
        gstart.append(len(mf))
        if qk is None: gaps[-1]["v"].append("s_nop 1")
        odd = []
        for i in range(8):
            g0 = None
            if qk is not None:
                kb, ds = i // 4, i % 4
                d = SB(qk.sb) + 4 * kb
                c = None if (ds > 0 or qk.masked) else 0
                g0 = add(mfma(d, KF(qk.u % 2, i), Q(qk.q, ds), c))
            g1 = add(mfma(O(pv.q, i), VF(pv.u % 2, i), PB(pv.pb)))
            if e is not None:
                (g0 or g1)["v"].append(f"v_exp_f32 {SB(e.sb).r(i)}, {SB(e.sb).r(i)}")
                if i % 2 == 1:
                    cv = f"v_cvt_pk_bf16_f32 {PB(e.pb).r(i//2)}, {SB(e.sb).r(i-1)}, {SB(e.sb).r(i)}"
                    if g0 is None: g1["v"].append("s_nop 0")
                    g1["v"].append(cv)
            odd.append(g1)
            if i == 0 and pv.sumsel:
                sel = SEL_BOTH if pv.sumsel == "both" else SEL_HI
                pair = PB(pv.pb & ~1)
                add(f"v_smfmac_f32_16x16x64_bf16 {LS(pv.q//2).r(0,4)}, {sel.r(0,4)}, {pair.r(0,8)}, v{V_IDX}")
        if cur is None: continue
        r = [read_ins(*x) for x in cur.reads]
        if len(r) <= 4: pos = [0, 2, 4, 6][:len(r)]
        elif len(r) <= 8: pos = list(range(8))[:len(r)] if len(r) > 6 else [0, 1, 2, 4, 5, 6][:len(r)]
        else: pos = sorted(list(range(8)) + [0, 2, 4, 6][:len(r) - 8])
        for x, p_ in zip(r, pos): odd[p_]["m"].append(x)
        for x in cur.valu:
            best = min(range(8), key=lambda k: len(odd[k]["m"]) + len(odd[k]["v"]))
            odd[best]["v"].append(x)
        cur._odd = odd
        cur._g0 = gstart[-1]
    for gi, cur in enumerate(groups):
        g0 = gstart[gi]
        for ev in cur.events:
            if ev[0] == "bar":
                gaps[g0]["s"].append(f"s_waitcnt vmcnt({ev[1]})")
                gaps[g0 + 1]["s"].append("s_barrier")
            elif ev[0] == "dma":
                odd = cur._odd
                lst = ev[1]
                free = sorted(range(1, 8), key=lambda k: (len(odd[k]["m"]) + len(odd[k]["v"]), k))[:len(lst)]
                for (sc, ld), k in zip(lst, sorted(free)):
                    gi_abs = next(j for j in range(len(gaps)) if gaps[j] is odd[k])
                    for t, x in enumerate(sc):
                        assert not any("lds" in y for y in gaps[gi_abs - len(sc) + t]["m"])
                        gaps[gi_abs - len(sc) + t]["s"].append(x)
                    odd[k]["m"].append(ld)
            elif ev[0] == "sc":
                j = g0 + ev[2]
                for x in ev[1]:
                    while gaps[j]["s"]: j += 1
                    gaps[j]["s"].append(x); j += 1
    outst = [(KF(0, f), -8 + 2 * (f - 4)) for f in range(4, 8)]
    allr = [(set(regs_of(r.r(0, 4))), t) for r, t in outst]
    for j, g in enumerate(gaps):
        for x in g["m"]:
            if x.startswith("ds_read"): allr.append((set(Ins(x).w), j))
    done = 0
    def need(k, before):
        nonlocal done
        if k < done: return
        j = before - 1
        jj = j
        while jj > allr[k][1] + 5 and jj >= 0 and gaps[jj]["s"] and jj > j - 4: jj -= 1
        if jj < 0 or gaps[jj]["s"]: jj = j
        assert jj >= 0 and allr[k][1] < jj, (k, before, allr[k])
        issued = sum(1 for _, t in allr if t < jj)
        kk = k
        while kk + 1 < issued and allr[kk + 1][1] <= jj - 7: kk += 1
        gaps[jj]["s"].append(f"s_waitcnt lgkmcnt({min(15, issued - 1 - kk)})")
        done = kk + 1
    for i, m in enumerate(mf):
        rs = set(Ins(m).r)
        last = -1
        for k, (d, t) in enumerate(allr):
            if t < i and (d & rs): last = k
        if last >= 0: need(last, i)
    if not drain:
        need(len(allr) - 5, len(mf))
        assert allr[-8][0] == set(regs_of(KF(0, 0).r(0, 4)))
    j = len(gaps) - 1 - len(tail_sc)
    out = []
    for i, (m, g) in enumerate(zip(mf, gaps)):
        out.append(m); out += g["s"] + g["m"] + g["v"]
    cost = sum(gap_cost(g["s"] + g["m"] + g["v"]) for g in gaps)
    return out, (len(mf), cost)

def adv_events():
    rb = f"v_add_u32 v{V_RB}, s{S_RD}, v{V_L16}"
    ra = f"v_add_u32 v{V_RA}, s{S_RD}, v{V_L16}"
    return rb, ra

def tile_groups(gs, first_second, nvm, dma=True, bar_at=0):
    rb, ra = adv_events()
    gs[bar_at].events.append(("bar", nvm))
    return gs

def region_A():
    dl, post = dma_list(); rb, ra = adv_events()
    g = []
    for u in (0, 1):
        g += [G(S0, u, reads=rd("V", u, 0, 4)), G(S1, u, sumsel="both", reads=rd("V", u, 4, 8)),
              G(L0, u, reads=rd("K", u + 1, 0, 4)), G(L1, u, sumsel="both", reads=rd("K", u + 1, 4, 8))]
    g[0].events.append(("bar", 8 * (DIST - 1)))
    for k in range(4): g[k].events.append(("dma", dl[2*k:2*k+2]))
    g[1].valu.append(rb)
    g[4].events.append(("sc", post + ring_adv(S_RD), 2))
    g[6].valu.append(ra)
    g[7].events.append(("sc", [f"s_sub_u32 s{S_CNT}, s{S_CNT}, 1", f"s_cmp_lg_u32 s{S_CNT}, 0"], 8))
    return build(g)

def region_C():
    dl, post = dma_list(); rb, ra = adv_events()
    g = []
    for u in (0, 1):
        g += [G(L0, u, reads=rd("V", u)), G(L1, u, sumsel="both", reads=rd("K", u + 1))]
    g[0].events.append(("bar", 8 * (DIST - 1)))
    g[0].events.append(("dma", dl[0:3])); g[1].events.append(("dma", dl[3:6])); g[2].events.append(("dma", dl[6:8]))
    g[0].valu.append(rb)
    g[1].events.append(("sc", ring_adv(S_RD), 9))
    g[3].events.append(("sc", post + [f"s_sub_u32 s{S_CNT}, s{S_CNT}, 1", f"s_cmp_lg_u32 s{S_CNT}, 0"], 1))
    g[3].valu.append(ra)
    return build(g)

def region_B(hi):
    dl, post = dma_list(); rb, ra = adv_events()
    if not hi:
        g = [G(S1, 0, reads=rd("V", 0, 0, 4), pre=mask_load(S0, 0)), G(S0, 0, True, sumsel="both", reads=rd("V", 0, 4, 8)),
             G(L0, 0, reads=rd("K", 1, 0, 4)), G(L1, 0, sumsel="both", reads=rd("K", 1, 4, 8)),
             G(S1, 1, sumsel="hi", reads=rd("V", 1, 0, 6)), G(L0, 1, reads=rd("V", 1, 6, 8) + rd("K", 2, 0, 3)), G(L1, 1, sumsel="both", reads=rd("K", 2, 3, 8)),
             G(S1, 2, sumsel="hi", reads=rd("V", 2, 0, 6)), G(L0, 2, reads=rd("V", 2, 6, 8) + rd("K", 3, 0, 3)), G(L1, 2, sumsel="both", reads=rd("K", 3, 3, 8), pre=mask_load(S1, 1)),
             G(S1, 3, True, sumsel="hi", reads=rd("V", 3, 0, 6), pre=mask_load(S0, 0)), G(L0, 3, reads=rd("V", 3, 6, 8) + rd("K", 4, 0, 3)), G(L1, 3, sumsel="both", reads=rd("K", 4, 3, 8), pre=mask_load(S1, 1))]
        ra1, rb2, ra2 = 5, 8, 11
    else:
        g = [G(S0, 0, reads=rd("V", 0, 0, 4)), G(S1, 0, sumsel="both", reads=rd("V", 0, 4, 8)),
             G(L0, 0, reads=rd("K", 1, 0, 4)), G(L1, 0, sumsel="both", reads=rd("K", 1, 4, 8), pre=mask_load(S0, 0)),
             G(S0, 1, True, reads=rd("V", 1, 0, 4)), G(S1, 1, sumsel="both", reads=rd("V", 1, 4, 8)),
             G(L0, 1, reads=rd("K", 2, 0, 4), pre=mask_load(S0, 0)), G(L1, 1, sumsel="both", reads=rd("K", 2, 4, 8), pre=mask_load(S1, 1)),
             G(S1, 2, True, sumsel="hi", reads=rd("V", 2, 0, 6)), G(L0, 2, reads=rd("V", 2, 6, 8) + rd("K", 3, 0, 3)), G(L1, 2, sumsel="both", reads=rd("K", 3, 3, 8), pre=mask_load(S1, 1)),
             G(L0, 3, reads=rd("V", 3)), G(L1, 3, sumsel="both", reads=rd("K", 4))]
        ra1, rb2, ra2 = 5, 9, 12
    g[0].events.append(("bar", 8 * (DIST - 1)))
    for k in range(4): g[k].events.append(("dma", dl[2*k:2*k+2]))
    g[1].valu.append(rb)
    g[4].events.append(("sc", post + ring_adv(S_RD), 2))
    g[ra1].valu.append(ra)
    g[7].events.append(("bar", 8 * (DIST - 1)))
    for k in range(4): g[7 + k].events.append(("dma", dl[2*k:2*k+2]))
    g[rb2].valu.append(rb)
    g[ra2 - 1].events.append(("sc", ring_adv(S_RD), 10))
    g[11].events.append(("sc", post, 2))
    g[ra2].valu.append(ra)
    return build(g)

def region_D(hi):
    rb, ra = adv_events()
    N = lambda reads=(): G(None, 0, reads=reads)
    if not hi:
        g = [G(L0, 0, True, sb=S0, reads=rd("V", 0)), G(L1, 0, sumsel="both", reads=rd("K", 1)),
             G(L1, 1, sb=L0, pb=S1, sumsel="hi", reads=rd("K", 2) + rd("V", 1, 0, 4)),
             G(L1, 2, sb=L1, pb=L1, sumsel="hi", reads=rd("V", 1, 4, 8) + rd("K", 3)),
             G(L1, 3, True, sb=S1, pb=S1, sumsel="hi", reads=rd("V", 2)),
             N(rd("V", 3)), N()]
        g[4].valu.append(rb)
    else:
        g = [G(L0, 0, reads=rd("V", 0)), G(L1, 0, sumsel="both", reads=rd("K", 1)),
             G(L0, 1, True, sb=S0, reads=rd("V", 1)), G(L1, 1, sumsel="both", reads=rd("K", 2)),
             G(L1, 2, True, sb=S1, pb=S1, sumsel="hi", reads=rd("V", 2)),
             N(), N()]
    g[0].events.append(("bar", 8 * (DIST - 1)))
    g[0].valu.append(rb)
    g[1].events.append(("sc", ring_adv(S_RD), 9))
    g[2].valu.append(ra)
    g[3].events.append(("bar", 8 * (DIST - 2)))
    return build_nodrain(g)

def build_nodrain(g):
    out, st = build(g, drain="explicit")
    return out, st

def prologue_loads(A):
    A(f"s_lshl_b32 s{S_T0}, s{S_H}, 20")
    if KV_OFF: A(f"s_add_u32 s{S_T0}, s{S_T0}, {KV_OFF}")
    srd_off(A, SRD_A, P_WS, f"s{S_T0}", 0)
    A(f"s_sub_u32 s{S_T0}, 16, s{S_J}")
    A(f"s_lshl_b32 s{SRD_A+2}, s{S_T0}, 16")
    A(f"s_lshl_b32 s{S_W8}, s{S_WAVE}, 13")
    A(f"s_mov_b32 s{S_SOFF}, 4096")
    for f in range(8):
        A(f"buffer_load_dwordx4 {KF(0, f).r(0,4)}, v{V_L16}, s[{SRD_A}:{SRD_A+3}], {'0' if f < 4 else 's%d' % S_SOFF} offen offset:{(f%4)*1024}")
    A(f"s_add_u32 s{S_SRC}, s{S_W8}, 8192")
    A(f"s_mov_b32 s{S_WR}, 0")
    A(f"s_mov_b32 s{S_RD}, 0")
    for t in range(DIST):
        dl, post = dma_list()
        for sc, ld in dl:
            A(sc)
            if len(sc) == 1: A("s_nop 0")
            A(ld)
        A(post)

def init_regs(A):
    T = V_TMP
    for r in range(16, 144, 2): A(f"v_pk_mov_b32 v[{r}:{r+1}], 0, 0")
    for k in range(8): A(f"v_mov_b32 {SB(L1).r(k)}, 0xff800000")
    for k in range(16): A(f"v_mov_b32 v{240+k}, 0")
    for k in range(32): A(f"v_accvgpr_write_b32 {VF(1, 0).r(k)}, 0")
    for k in range(8): A(f"v_accvgpr_write_b32 {LS(0).r(k)}, 0")
    A(f"v_mov_b32 v{V_RA}, v{V_L16}")
    A(f"v_bfe_u32 v{T}, v0, 1, 1")
    A(f"v_lshrrev_b32 v{T+1}, 5, v0")
    A(f"v_mov_b32 v{T+2}, 0x3f803f80")
    A(f"v_cmp_eq_u32 vcc, v{T}, v{T+1}")
    A(f"v_and_b32 v{T+4}, v{T}, v{T+1}")
    A(f"v_and_b32 v{T+5}, 1, v0")
    A(f"v_cndmask_b32 v{T+3}, 0, v{T+2}, vcc")
    A(f"v_mul_u32_u24 v{V_IDX}, 0xaaaa, v{T+5}")
    A(f"v_cmp_eq_u32 vcc, 1, v{T+4}")
    A(f"v_add_u32 v{V_IDX}, 0x4444, v{V_IDX}")
    for k in range(4): A(f"v_accvgpr_write_b32 {SEL_BOTH.r(k)}, v{T+3}")
    A(f"v_cndmask_b32 v{T+3}, 0, v{T+2}, vcc")
    A("s_nop 0")
    for k in range(4): A(f"v_accvgpr_write_b32 {SEL_HI.r(k)}, v{T+3}")
    A(f"v_lshrrev_b32 v{T}, 4, v0")
    A(f"v_lshlrev_b32 v{T}, 2, v{T}")
    A(f"v_and_b32 v{T+1}, 15, v0")
    A(f"v_sub_u32 v{T}, v{T+1}, v{T}")
    A(f"s_and_b32 s{S_T0}, s{S_WAVE}, 1")
    A(f"s_lshl_b32 s{S_T0}, s{S_T0}, 4")
    A(f"s_sub_u32 s{S_T1}, 16, s{S_T0}")
    A(f"v_mov_b32 v{T+2}, 0xff800000")
    for par, sreg in ((0, S_T0), (1, S_T1)):
        A(f"v_add_u32 v{T+1}, s{sreg}, v{T}")
        for k in range(8):
            A(f"v_cmp_le_i32 vcc, {16*(k//4) + k%4}, v{T+1}")
            A("s_nop 1")
            A(f"v_cndmask_b32 v{T+3}, v{T+2}, 0, vcc")
            A(f"v_accvgpr_write_b32 {MASK(par).r(k)}, v{T+3}")

def main(A, paths):
    ra, sa = region_A(); rc, sc_ = region_C()
    rb0, sb0 = region_B(False); rb1, sb1 = region_B(True)
    rd0, sd0 = region_D(False); rd1, sd1 = region_D(True)
    print("attn (mfma count, est cycles): A", sa, "B", sb0, sb1, "C", sc_, "D", sd0, sd1)
    pre = list(A.lines)
    A(f"s_waitcnt vmcnt({8*DIST + 8})")
    A(f"s_lshl_b32 s{S_CNT}, s{S_J}, 1")
    A(f"s_cmp_eq_u32 s{S_CNT}, 0")
    A("s_cbranch_scc1 L_att_B")
    A(".p2align 4")
    A.label("L_att_A"); A(ra); A("s_cbranch_scc1 L_att_A")
    A.label("L_att_B")
    A(f"s_cmp_ge_u32 s{S_WAVE}, 2")
    A("s_cbranch_scc1 L_att_B1")
    A(rb0); A("s_branch L_att_B2")
    A.label("L_att_B1"); A(rb1)
    A.label("L_att_B2")
    A(f"s_lshl_b32 s{S_CNT}, s{S_J}, 2")
    A(f"s_sub_u32 s{S_CNT}, 28, s{S_CNT}")
    A(f"s_cmp_eq_u32 s{S_CNT}, 0")
    A("s_cbranch_scc1 L_att_D")
    A(".p2align 4")
    A.label("L_att_C"); A(rc); A("s_cbranch_scc1 L_att_C")
    A.label("L_att_D")
    A(f"s_cmp_ge_u32 s{S_WAVE}, 2")
    A("s_cbranch_scc1 L_att_D1")
    A(rd0); A("s_branch L_att_D2")
    A.label("L_att_D1"); A(rd1)
    A.label("L_att_D2")
    w = [f"s_waitcnt vmcnt({8*DIST + 8})"]
    br = ["s_branch x"]
    for b, d in ((rb0, rd0), (rb1, rd1)):
        paths.append(pre + w + ra + br + ra + br + b + br + rc + br + rc + br + d)
        paths.append(pre + w + b + br + d)

def epilogue(A, store_flags="", slow_label=None):
    T = V_TMP
    A("s_nop 7")
    for k in range(8): A(f"v_accvgpr_read_b32 v{144+k}, {LS(0).r(k)}")
    A(f"s_lshl_b32 s{S_SOFF}, s{S_H}, 14")
    A(f"s_add_u32 s{S_SOFF}, s{S_SOFF}, {CTX_OFF}")
    srd_off(A, SRD_O, P_WS, f"s{S_SOFF}", 16 << 20)
    for q in range(4): A(f"v_add_f32 v{152+2*q}, v{144+2*q}, v{145+2*q}")
    for q in range(4):
        A(f"s_lshr_b32 s{S_RO+q}, s{S_ROW+q}, 2")
        A(f"s_lshl_b32 s{S_RO+q}, s{S_RO+q}, 19")
        A(f"s_and_b32 s{S_SOFF}, s{S_ROW+q}, 3")
        A(f"s_lshl_b32 s{S_SOFF}, s{S_SOFF}, 10")
        A(f"s_add_u32 s{S_RO+q}, s{S_RO+q}, s{S_SOFF}")
    if slow_label:
        A(f"v_min3_f32 v{T}, v152, v154, v156"); A(f"v_max3_f32 v{T+1}, v152, v154, v156")
        A(f"v_add_f32 v{T+2}, v152, v154"); A(f"v_add_f32 v{T+3}, v156, v158")
        A(f"v_min_f32 v{T}, v{T}, v158"); A(f"v_add_f32 v{T+2}, v{T+2}, v{T+3}")
        A(f"v_cmp_lt_f32 vcc, 0x33800000, v{T}")
        A(f"v_mov_b32 v{T+3}, 0x4b800000")
        A(f"v_cmp_gt_f32 s[{S_T0}:{S_T1}], v{T+3}, v{T+2}")
        A(f"s_and_b64 vcc, vcc, s[{S_T0}:{S_T1}]")
        A("s_cmp_eq_u64 vcc, exec")
        A(f"s_cbranch_scc0 {slow_label}")
        A.label(slow_label + "_ret")
    for q in range(4): A(f"v_rcp_f32 v{152+2*q}, v{152+2*q}")
    for q in range(4):
        x = O(q, 0)
        for k in range(0, 32, 2): A(f"v_pk_mul_f32 {x.r(k,2)}, {x.r(k,2)}, v[{152+2*q}:{153+2*q}] op_sel_hi:[1,0]")
        for ds in range(4):
            for k in range(4): A(f"v_cvt_pk_bf16_f32 {x.r(8*ds+k)}, {x.r(8*ds+2*k)}, {x.r(8*ds+2*k+1)}")
            A(f"buffer_store_dwordx4 {x.r(8*ds,4)}, v{V_L16}, s[{SRD_O}:{SRD_O+3}], s{S_RO+q} offen{store_flags}")
            if ds < 3: A(f"s_add_u32 s{S_RO+q}, s{S_RO+q}, 4096")
```

```python
from asmlib import *

S_LEN, M_DIM, DC, NH, HD, FF = 2048, 640, 512, 32, 128, 1728
KV_OFF  = 0
CTX_OFF = 32 << 20
H_OFF   = 48 << 20
WOP_OFF = 56 << 20
W2P_OFF = 62 << 20
P_X, P_CKV, P_WQ, P_WUK, P_WUV, P_WO, P_BX, P_W1, P_B1, P_W2, P_B2, P_GATE, P_OUT, P_DBG, P_WS = [4 + 2*i for i in range(15)]
SRD_A, SRD_W, SRD_W2, SRD_O, SRD_O2, SRD_X = 36, 40, 44, 48, 52, 56
S_WAVE, S_H, S_J = 60, 61, 62
S_T0, S_T1, S_T2, S_T3 = 64, 65, 66, 67
S_SOFF = 68
S_MA, S_MW, S_MW2 = 69, 70, 71

def srd(A, d, base_lo, base_hi, size):
    A(f"s_mov_b32 s{d}, {base_lo}")
    A(f"s_and_b32 s{d+1}, {base_hi}, 0xffff")
    A(f"s_mov_b32 s{d+2}, {size}")
    A(f"s_mov_b32 s{d+3}, 0x20000")

def srd_off(A, d, ptr, off, size):
    A(f"s_add_u32 s{d}, s{ptr}, {off}")
    A(f"s_addc_u32 s{d+1}, s{ptr+1}, 0")
    A(f"s_and_b32 s{d+1}, s{d+1}, 0xffff")
    A(f"s_mov_b32 s{d+2}, {size}")
    A(f"s_mov_b32 s{d+3}, 0x20000")

def kernel_entry(A, exit_label, nwg=256):
    A(f"s_cmp_ge_u32 s2, {nwg}")
    A(f"s_cbranch_scc1 {exit_label}")
    A("s_load_dwordx16 s[4:19], s[0:1], 0")
    A("s_load_dwordx8 s[20:27], s[0:1], 64")
    A("s_load_dwordx4 s[28:31], s[0:1], 96")
    A("s_load_dwordx2 s[32:33], s[0:1], 112")
    A(f"v_readfirstlane_b32 s{S_WAVE}, v0")
    A("v_and_b32 v0, 63, v0")
    A(f"s_lshr_b32 s{S_WAVE}, s{S_WAVE}, 6")
    A(f"s_and_b32 s{S_H}, s2, 31")
    A(f"s_lshr_b32 s{S_J}, s2, 5")

def code_prefetch(A, start_label, nbytes, tmpv, maxbytes=32768, srd_d=SRD_X):
    A(f"s_getpc_b64 s[{srd_d}:{srd_d+1}]")
    lab = f"L_pc_{start_label}_{len(A.lines)}"
    A.label(lab)
    A(f"s_add_u32 s{srd_d}, s{srd_d}, {start_label}-{lab}")
    A(f"s_addc_u32 s{srd_d+1}, s{srd_d+1}, 0")
    A(f"s_and_b32 s{srd_d+1}, s{srd_d+1}, 0xffff")
    A(f"s_mov_b32 s{srd_d+2}, {nbytes}")
    A(f"s_mov_b32 s{srd_d+3}, 0x20000")
    A(f"v_lshlrev_b32 v{tmpv}, 7, v0")
    A(f"s_lshl_b32 s{S_T0}, s{S_WAVE}, 13")
    n = 0
    for off in range(0, maxbytes, 32768):
        if off: A(f"s_add_u32 s{S_T0}, s{S_T0}, 32768")
        A(f"buffer_load_dword v{tmpv+1}, v{tmpv}, s[{srd_d}:{srd_d+3}], s{S_T0} offen")
        n += 1
    return n

def kd(name, nv=512, ao=256):
    return f""".section .rodata,"a"
.p2align 6
.amdhsa_kernel {name}
  .amdhsa_next_free_vgpr {nv}
  .amdhsa_next_free_sgpr 102
  .amdhsa_accum_offset {ao}
  .amdhsa_group_segment_fixed_size 0
  .amdhsa_kernarg_size 120
  .amdhsa_user_sgpr_count 2
  .amdhsa_user_sgpr_kernarg_segment_ptr 1
  .amdhsa_system_sgpr_workgroup_id_x 1
  .amdhsa_float_denorm_mode_32 3
  .amdhsa_float_denorm_mode_16_64 3
.end_amdhsa_kernel
"""
def khead(name):
    return f""".text
.globl {name}
.p2align 8
.type {name},@function
{name}:
"""

import os
STAMPS = int(os.environ.get("STAMPS", "0"))
STAMP_OFF = 70 << 20
_stamp = {"n": 0, "first": 0}
def stamp(A):
    if not STAMPS: return
    A("s_memrealtime s[72:73]" if STAMPS == 1 else "s_memtime s[72:73]")
    A("s_waitcnt lgkmcnt(0)")
    A(f"s_mov_b32 s{80 + _stamp['n'] - _stamp['first']}, s72")
    _stamp["n"] += 1
def stamp_flush(A):
    if not STAMPS: return
    A("s_waitcnt vmcnt(0)")
    stamp(A)
    A(f"s_lshl_b32 s{S_T0}, s2, 2")
    A(f"s_add_u32 s{S_T0}, s{S_T0}, s{S_WAVE}")
    A(f"s_lshl_b32 s{S_T0}, s{S_T0}, 8")
    A(f"s_add_u32 s{S_T0}, s{S_T0}, {STAMP_OFF}")
    srd_off(A, SRD_X, P_WS, f"s{S_T0}", 256)
    A("v_mov_b32 v1, 0")
    for i in range(_stamp["first"], _stamp["n"]):
        A(f"v_mov_b32 v2, s{80 + i - _stamp['first']}")
        A(f"buffer_store_dword v2, v1, s[{SRD_X}:{SRD_X+3}], 0 offen offset:{4*i}")
    _stamp["first"] = _stamp["n"]
G_OFF = 65 << 20
```

```python
from common import *

def wpack_issue(A, lds_base, vt, slab_sreg):
    A(f"s_cmp_lt_u32 s{slab_sreg}, 128")
    A(f"s_cselect_b32 s{S_T2}, s{P_WO}, s{P_W2}")
    A(f"s_cselect_b32 s{S_T3}, s{P_WO+1}, s{P_W2+1}")
    A(f"s_and_b32 s{S_T0}, s{slab_sreg}, 127")
    A(f"s_mul_i32 s{S_T0}, s{S_T0}, 40960")
    srd_off(A, SRD_X, S_T2, f"s{S_T0}", 40960)
    A(f"s_cmp_lt_u32 s{slab_sreg}, 182")
    A(f"s_cselect_b32 s{SRD_X+2}, s{SRD_X+2}, 0")
    A(f"s_mul_i32 s{S_T0}, s{S_WAVE}, 10240")
    for i in range(10):
        if i % 4 == 0:
            A(f"s_add_u32 m0, s{S_T0}, {lds_base + i*1024}")
            A(f"s_add_u32 s{S_T1}, s{S_T0}, {i*1024}")
        A(f"buffer_load_dwordx4 v{vt}, s[{SRD_X}:{SRD_X+3}], s{S_T1} offen offset:{(i%4)*1024} lds")

def wpack_finish(A, lds_base, vt, va, dst, slab_sreg, store_flags=""):
    A(f"v_lshrrev_b32 v{va}, 2, v0")
    A(f"v_mul_u32_u24 v{va}, 1280, v{va}")
    A(f"v_and_b32 v{va+1}, 3, v0")
    A(f"v_lshl_add_u32 v{va}, v{va+1}, 3, v{va}")
    A(f"s_mul_i32 s{S_T0}, s{S_WAVE}, 320")
    A(f"s_add_u32 s{S_T0}, s{S_T0}, {lds_base}")
    A(f"v_add_u32 v{va}, s{S_T0}, v{va}")
    for c in range(10):
        for sec in range(2):
            A(f"ds_read_b64_tr_b16 {dst.r(4*c + 2*sec, 2)}, v{va} offset:{c*32 + sec*20480}")
    A(f"s_cmp_lt_u32 s{slab_sreg}, 128")
    A(f"s_cselect_b32 s{S_T0}, {WOP_OFF}, {W2P_OFF}" if False else f"s_mov_b32 s{S_T0}, {W2P_OFF}")
    A(f"s_cselect_b32 s{S_T0}, {WOP_OFF}, s{S_T0}")
    A(f"s_cselect_b32 s{S_T1}, {128*5120}, {54*5120}" if False else f"s_mov_b32 s{S_T1}, {54*5120}")
    A(f"s_cselect_b32 s{S_T1}, {128*5120}, s{S_T1}")
    A(f"s_and_b32 s{S_T2}, s{slab_sreg}, 127")
    A(f"s_mul_i32 s{S_T2}, s{S_T2}, 5120")
    A(f"s_add_u32 s{S_T0}, s{S_T0}, s{S_T2}")
    A(f"s_mul_i32 s{S_T2}, s{S_WAVE}, s{S_T1}")
    A(f"s_lshl_b32 s{S_T2}, s{S_T2}, 1")
    A(f"s_add_u32 s{S_T0}, s{S_T0}, s{S_T2}")
    srd_off(A, SRD_X, P_WS, f"s{S_T0}", 128 * 5120 + 5120)
    A(f"s_cmp_lt_u32 s{slab_sreg}, 182")
    A(f"s_cselect_b32 s{SRD_X+2}, s{SRD_X+2}, 0")
    A(f"s_mov_b32 s{S_T2}, 4096")
    A(f"s_add_u32 s{S_T3}, s{S_T1}, 4096")
    A("s_waitcnt lgkmcnt(0)")
    for c in range(10):
        c5 = c % 5
        so = ("0" if c5 < 4 else f"s{S_T2}") if c < 5 else (f"s{S_T1}" if c5 < 4 else f"s{S_T3}")
        A(f"buffer_store_dwordx4 {dst.r(4*c, 4)}, v{vt}, s[{SRD_X}:{SRD_X+3}], {so} offen offset:{(c5%4)*1024}{store_flags}")

def gate_issue(A, va, xr, gr):
    A(f"s_sub_u32 s{S_T0}, 14, s{S_J}")
    A(f"s_cmp_lt_u32 s{S_H}, 16")
    A(f"s_cselect_b32 s{S_T0}, s{S_J}, s{S_T0}")
    A(f"s_lshl_b32 s{S_T0}, s{S_T0}, 4")
    A(f"s_add_u32 s{S_T0}, s{S_T0}, s{S_H}")
    A(f"s_mul_i32 s{S_T1}, s{S_T0}, 10240")
    srd_off(A, SRD_X, P_X, f"s{S_T1}", 10240)
    srd(A, SRD_O2, f"s{P_GATE}", f"s{P_GATE+1}", 1280)
    A(f"v_lshrrev_b32 v{va}, 3, v0")
    A(f"v_mul_u32_u24 v{va}, 1280, v{va}")
    A(f"v_and_b32 v{va+1}, 7, v0")
    A(f"v_lshlrev_b32 v{va+1}, 4, v{va+1}")
    A(f"v_add_u32 v{va}, v{va}, v{va+1}")
    for i in range(10):
        A(f"buffer_load_dwordx4 v[{xr+4*i}:{xr+4*i+3}], v{va}, s[{SRD_X}:{SRD_X+3}], 0 offen offset:{128*i}")
        A(f"buffer_load_dwordx4 v[{gr+4*i}:{gr+4*i+3}], v{va+1}, s[{SRD_O2}:{SRD_O2+3}], 0 offen offset:{128*i}")
    A(f"s_lshl_b32 s{S_T0}, s{S_T0}, 5")
    A(f"s_add_u32 s{S_T0}, s{S_T0}, {G_OFF}")
    srd_off(A, SRD_O2, P_WS, f"s{S_T0}", 32)

def gate_finish(A, va, xr, gr, store_flags=""):
    for k in range(4): A(f"v_mov_b32 v{va+k}, 0")
    for i in range(40): A(f"v_dot2c_f32_bf16 v{va + i%4}, v{xr+i}, v{gr+i}")
    A("s_nop 2")
    A(f"v_add_f32 v{va}, v{va}, v{va+1}")
    A(f"v_add_f32 v{va+2}, v{va+2}, v{va+3}")
    A(f"v_add_f32 v{va}, v{va}, v{va+2}")
    A("s_nop 1")
    A(f"v_add_f32_dpp v{va}, v{va}, v{va} quad_perm:[1,0,3,2] row_mask:0xf bank_mask:0xf")
    A("s_nop 1")
    A(f"v_add_f32_dpp v{va}, v{va}, v{va} quad_perm:[2,3,0,1] row_mask:0xf bank_mask:0xf")
    A("s_nop 1")
    A(f"v_add_f32_dpp v{va}, v{va}, v{va} row_half_mirror row_mask:0xf bank_mask:0xf")
    A(f"v_mul_f32 v{va}, 0xbfb8aa3b, v{va}")
    A(f"v_exp_f32 v{va}, v{va}")
    A(f"v_lshrrev_b32 v{va+1}, 3, v0")
    A(f"v_add_f32 v{va}, 1.0, v{va}")
    A(f"v_rcp_f32 v{va}, v{va}")
    A(f"v_lshlrev_b32 v{va+1}, 2, v{va+1}")
    A(f"buffer_store_dword v{va}, v{va+1}, s[{SRD_O2}:{SRD_O2+3}], 0 offen{store_flags}")
```

```python
from common import *

ACT_BASE, ACT_SLOT = 0, 32768
W_BASE, W_SLOT = 98304, 16384
V_WADDR = 1
V_AADDR = 5
V_VOFFA, V_VOFFW, V_ST = 9, 10, 11
V_TMP = 12

def acc(tb, cb):
    if cb < 4:
        i = tb * 4 + cb
    else:
        i = 32 + (cb - 4) * 8 + tb
    return Reg("v", 16 + 4 * i) if i < 60 else Reg("a", 128 + 4 * (i - 60))
def fr_act(set_, tb): return Reg("a", 64 * set_ + 4 * tb)
def fr_w(set_, cb): return Reg("a", 64 * set_ + 32 + 4 * cb)

def gemm_addr_setup(A, rowstride_act, wave_rows_expr=None):
    A(f"v_and_b32 v{V_TMP}, 15, v0")
    A(f"s_and_b32 s{S_T0}, s{S_WAVE}, 1")
    A(f"s_lshl_b32 s{S_T0}, s{S_T0}, 14")
    A(f"v_lshlrev_b32 v{V_TMP}, 7, v{V_TMP}")
    A(f"v_add_u32 v{V_TMP}, s{S_T0}, v{V_TMP}")
    A(f"v_lshrrev_b32 v{V_TMP+1}, 4, v0")
    A(f"v_and_b32 v{V_TMP+2}, 6, v0")
    A(f"v_xor_b32 v{V_TMP+1}, v{V_TMP+1}, v{V_TMP+2}")
    A(f"v_lshl_add_u32 v{V_AADDR}, v{V_TMP+1}, 4, v{V_TMP}")
    A(f"v_xor_b32 v{V_AADDR+1}, 64, v{V_AADDR}")
    A(f"v_add_u32 v{V_AADDR+2}, {2*ACT_SLOT}, v{V_AADDR}")
    A(f"v_add_u32 v{V_AADDR+3}, {2*ACT_SLOT}, v{V_AADDR+1}")

def act_read(t, ks, tb, dst):
    slot = t % 3
    if slot < 2: return f"ds_read_b128 {dst.r(0,4)}, v{V_AADDR+ks} offset:{slot*ACT_SLOT + tb*2048}"
    return f"ds_read_b128 {dst.r(0,4)}, v{V_AADDR+2+ks} offset:{tb*2048}"

def setup(A):
    A("s_waitcnt lgkmcnt(0)")
    A(f"s_lshl_b32 s{S_T0}, s{S_J}, 18")
    srd_off(A, SRD_A, P_CKV, f"s{S_T0}", 256 * 1024)
    A(f"s_cmp_ge_u32 s{S_WAVE}, 2")
    A(f"s_cselect_b32 s{S_T2}, s{P_WUV}, s{P_WUK}")
    A(f"s_cselect_b32 s{S_T3}, s{P_WUV+1}, s{P_WUK+1}")
    A(f"s_lshl_b32 s{S_T0}, s{S_H}, 8")
    srd_off(A, SRD_W, S_T2, f"s{S_T0}", 511 * 8192 + 256)
    A(f"v_lshrrev_b32 v{V_TMP}, 3, v0")
    A(f"v_and_b32 v{V_TMP+1}, 6, v{V_TMP}")
    A(f"v_and_b32 v{V_TMP+2}, 7, v0")
    A(f"v_xor_b32 v{V_TMP+1}, v{V_TMP+1}, v{V_TMP+2}")
    A(f"s_lshl_b32 s{S_T0}, s{S_WAVE}, 6")
    A(f"v_add_u32 v{V_TMP}, s{S_T0}, v{V_TMP}")
    A(f"v_lshlrev_b32 v{V_TMP}, 10, v{V_TMP}")
    A(f"v_lshl_add_u32 v{V_VOFFA}, v{V_TMP+1}, 4, v{V_TMP}")
    A(f"s_lshl_b32 s{S_MA}, s{S_WAVE}, 13")
    A(f"s_and_b32 s{S_T0}, s{S_WAVE}, 1")
    A(f"s_lshl_b32 s{S_T1}, s{S_T0}, 3")
    A(f"v_lshrrev_b32 v{V_TMP}, 4, v0")
    A(f"v_lshl_or_b32 v{V_TMP+1}, v{V_TMP}, 1, s{S_T1}")
    A(f"v_and_b32 v{V_TMP+2}, 15, v0")
    A(f"v_xor_b32 v{V_TMP+1}, v{V_TMP+1}, v{V_TMP+2}")
    A(f"v_add_u32 v{V_TMP}, s{S_T1}, v{V_TMP}")
    A(f"v_lshlrev_b32 v{V_TMP}, 13, v{V_TMP}")
    A(f"v_lshl_add_u32 v{V_VOFFW}, v{V_TMP+1}, 4, v{V_TMP}")
    A(f"s_lshr_b32 s{S_T1}, s{S_WAVE}, 1")
    A(f"s_lshl_b32 s{S_T1}, s{S_T1}, 13")
    A(f"s_lshl_b32 s{S_T0}, s{S_T0}, 11")
    A(f"s_add_u32 s{S_MW}, s{S_T0}, s{S_T1}")
    A(f"s_add_u32 s{S_MW}, s{S_MW}, {W_BASE}")

def setup2(A):
    gemm_addr_setup(A, 1024)
    A(f"v_lshrrev_b32 v{V_TMP}, 4, v0")
    A(f"v_bfe_u32 v{V_TMP+1}, v0, 2, 2")
    A(f"v_lshl_add_u32 v{V_TMP+2}, v{V_TMP}, 3, v{V_TMP+1}")
    A(f"v_lshlrev_b32 v{V_TMP+2}, 8, v{V_TMP+2}")
    A(f"v_bfe_u32 v{V_TMP+3}, v0, 2, 3")
    A(f"s_lshr_b32 s{S_T0}, s{S_WAVE}, 1")
    A(f"s_lshl_b32 s{S_T0}, s{S_T0}, 2")
    A(f"v_xor_b32 v{V_TMP+3}, s{S_T0}, v{V_TMP+3}")
    A(f"v_lshl_add_u32 v{V_TMP+2}, v{V_TMP+3}, 5, v{V_TMP+2}")
    A(f"v_and_b32 v{V_TMP+3}, 3, v0")
    A(f"v_lshl_add_u32 v{V_TMP+2}, v{V_TMP+3}, 3, v{V_TMP+2}")
    A(f"v_add_u32 v{V_WADDR}, {W_BASE}, v{V_TMP+2}")
    for n in range(1, 4):
        A(f"v_xor_b32 v{V_WADDR+n}, {32*n}, v{V_WADDR}")
    A(f"s_lshl_b32 s{S_T0}, s{S_H}, 20")
    A(f"s_lshl_b32 s{S_T1}, s{S_J}, 17")
    A(f"s_add_u32 s{S_T0}, s{S_T0}, s{S_T1}")
    A(f"s_and_b32 s{S_T1}, s{S_WAVE}, 1")
    A(f"s_lshl_b32 s{S_T1}, s{S_T1}, 16")
    A(f"s_add_u32 s{S_T0}, s{S_T0}, s{S_T1}")
    if KV_OFF: A(f"s_add_u32 s{S_T0}, s{S_T0}, {KV_OFF}")
    srd_off(A, SRD_O, P_WS, f"s{S_T0}", 65536)
    A(f"v_lshlrev_b32 v{V_ST}, 4, v0")

def act_dma(t, half):
    out = []
    for q in range(4):
        i = 4 * half + q
        sc = []
        if q == 0: sc.append(f"s_add_u32 m0, s{S_MA}, {ACT_BASE + (t%3)*ACT_SLOT + half*4096}")
        sc.append(f"s_mov_b32 s{S_SOFF}, {t*128 + i*8192 - q*1024}")
        out.append((sc, f"buffer_load_dwordx4 v{V_VOFFA}, s[{SRD_A}:{SRD_A+3}], s{S_SOFF} offen offset:{q*1024} lds"))
    return out
def w_dma(st):
    out = []
    for q, row in enumerate((0, 4, 16, 20)):
        sc = []
        if q % 2 == 0: sc.append(f"s_add_u32 m0, s{S_MW}, {(st%4)*W_SLOT + row*256}")
        sc.append(f"s_mov_b32 s{S_SOFF}, {(st*32 + row)*8192 - (q%2)*1024}")
        out.append((sc, f"buffer_load_dwordx4 v{V_VOFFW}, s[{SRD_W}:{SRD_W+3}], s{S_SOFF} offen offset:{(q%2)*1024} lds"))
    return out
def emit_dma(A, lst):
    for sc, ld in lst: A(sc); A(ld)

def reads(st):
    set_ = st % 2; t, ks = st // 2, st % 2
    r = []
    wr = []
    for cb in range(8):
        n, mat = cb % 4, cb // 4
        for sec in range(2):
            wr.append(f"ds_read_b64_tr_b16 {fr_w(set_, cb).r(2*sec, 2)}, v{V_WADDR+n} offset:{(st%4)*W_SLOT + mat*8192 + sec*1024}")
    ar = [act_read(t, ks, tb, fr_act(set_, tb)) for tb in range(8)]
    for i in range(8): r += [ar[i], wr[2*i], wr[2*i+1]]
    return r

def mfmas(st):
    set_ = st % 2
    out = []
    for tb in range(8):
        for cb in range(8):
            c = 0 if st == 0 else None
            if cb < 4: out.append(mfma(acc(tb, cb), fr_w(set_, cb), fr_act(set_, tb), c))
            else:      out.append(mfma(acc(tb, cb), fr_act(set_, tb), fr_w(set_, cb), c))
    return out

NST = 16
def place(gaps, rd, dm, r0=2, rstep=2, d0=3, dstep=6):
    for i, x in enumerate(rd): gaps[r0 + rstep * i].append(x)
    for i, (sc, ld) in enumerate(dm):
        g = d0 + dstep * i
        if len(sc) == 2: gaps[g - 1].insert(0, sc[0])
        gaps[g].insert(0, sc[-1]); gaps[g].append(ld)

def body(A, store_flags=""):
    stamp(A)
    if os.environ.get("NOPF") != "1":
        code_prefetch(A, "L_p1a_main", "L_p1a_end-L_p1a_main", 254)
    setup(A)
    emit_dma(A, act_dma(0, 0) + act_dma(0, 1) + w_dma(0) + w_dma(1))
    emit_dma(A, act_dma(1, 0) + act_dma(1, 1) + w_dma(2) + w_dma(3))
    emit_dma(A, act_dma(2, 0))
    setup2(A)
    A.label("L_p1a_main")
    A("s_waitcnt vmcnt(24)")
    A("s_barrier")
    stamp(A)
    A(reads(0))
    issued = [4 + 16 + 4]
    for st in range(NST):
        dm = []
        if st + 4 < NST: dm += w_dma(st + 4)
        if st == 0: dm += act_dma(2, 1)
        else:
            t = (st - 1) // 2 + 3
            if t < NST // 2: dm += act_dma(t, (st - 1) % 2)
        gaps = [[] for _ in range(64)]
        if st + 1 < NST:
            if st == 0: n = 20
            elif st == 1: n = 4 + 4 + 8
            elif st == 2: n = 4 + 8 + 8
            else: n = cnt[st - 1] + cnt[st - 2]
            gaps[0].append(f"s_waitcnt vmcnt({n})")
            gaps[1].append("s_barrier")
            place(gaps, reads(st + 1), dm)
        if st == 0: cnt = {}
        cnt[st] = len(dm)
        A("s_waitcnt lgkmcnt(0)")
        if st in (4, 8, 12): stamp(A)
        A(weave(mfmas(st), gaps))
    stamp(A)
    A("s_nop 7")
    A(f"s_lshr_b32 s{S_T0}, s{S_WAVE}, 1")
    A(f"s_lshl_b32 s{S_T1}, s{S_T0}, 11")
    A(f"s_lshl_b32 s{S_T2}, s{S_T0}, 12")
    A(f"s_add_u32 s{S_T2}, s{S_T2}, 8192")
    def pack(ra, rb):
        ins = []
        if ra.kind == "a":
            for k in range(4): ins.append(f"v_accvgpr_read_b32 v{16+k}, {ra.r(k)}")
            for k in range(4): ins.append(f"v_accvgpr_read_b32 v{20+k}, {rb.r(k)}")
            ra, rb = Reg("v", 16), Reg("v", 20)
        ins += [f"v_cvt_pk_bf16_f32 {ra.r(0)}, {ra.r(0)}, {ra.r(1)}", f"v_cvt_pk_bf16_f32 {ra.r(1)}, {ra.r(2)}, {ra.r(3)}",
                f"v_cvt_pk_bf16_f32 {ra.r(2)}, {rb.r(0)}, {rb.r(1)}", f"v_cvt_pk_bf16_f32 {ra.r(3)}, {rb.r(2)}, {rb.r(3)}"]
        return ins, ra
    for tb in range(8):
        for x in range(2):
            ins, r = pack(acc(tb, 2*x), acc(tb, 2*x+1))
            A(ins)
            if x == 0: A(f"s_add_u32 s{S_SOFF}, s{S_T1}, {(tb>>1)*16384 + (tb&1)*4096}")
            A(f"buffer_store_dwordx4 {r.r(0,4)}, v{V_ST}, s[{SRD_O}:{SRD_O+3}], s{S_SOFF} offen offset:{x*1024}{store_flags}")
    for uu in range(4):
        A(f"s_add_u32 s{S_SOFF}, s{S_T2}, {uu*16384}")
        for n in range(4):
            ins, r = pack(acc(2*uu, 4+n), acc(2*uu+1, 4+n))
            if r.n == 16: A("s_nop 1")
            A(ins)
            A(f"buffer_store_dwordx4 {r.r(0,4)}, v{V_ST}, s[{SRD_O}:{SRD_O+3}], s{S_SOFF} offen offset:{n*1024}{store_flags}")
    stamp(A)
    A.label("L_p1a_end")
```

```python
from common import *
import math
from p1a import ACT_BASE, ACT_SLOT, W_BASE, W_SLOT, emit_dma

V_AADDR = 240
V_WQ = 244
V_W1 = 252
V_VOFFA, V_VOFFW, V_VOFF1 = 1, 2, 3
V_L16 = 4
V_TMP = 8
S_ROW = 74
S_RO = 96
NST = 20
ACC0 = 16
def accq(qb, db): return Reg("v", ACC0 + 32 * qb + 4 * db)
def acch(qb, fb): return Reg("v", ACC0 + 128 + 16 * qb + 4 * fb)
def fr_act(set_, qb): return Reg("a", 64 * set_ + 4 * qb)
def fr_w(set_, cb): return Reg("a", 64 * set_ + 16 + 4 * cb)

def rows_setup(A):
    A(f"s_lshl_b32 s{S_T0}, s{S_J}, 3")
    A(f"s_sub_u32 s{S_T1}, 120, s{S_T0}")
    A(f"s_sub_u32 s{S_T2}, 7, s{S_WAVE}")
    A(f"s_add_u32 s{S_ROW}, s{S_T0}, s{S_WAVE}")
    A(f"s_add_u32 s{S_ROW+1}, s{S_T0}, s{S_T2}")
    A(f"s_add_u32 s{S_ROW+2}, s{S_T1}, s{S_WAVE}")
    A(f"s_add_u32 s{S_ROW+3}, s{S_T1}, s{S_T2}")

def setup(A):
    rows_setup(A)
    for q in range(4): A(f"s_mul_i32 s{S_RO+q}, s{S_ROW+q}, {16*1280}")
    srd(A, SRD_A, f"s{P_X}", f"s{P_X+1}", 2048 * 1280)
    A(f"s_lshl_b32 s{S_T0}, s{S_H}, 8")
    srd_off(A, SRD_W, P_WQ, f"s{S_T0}", 639 * 8192 + 256)
    A(f"s_lshl_b32 s{S_T0}, s{S_H}, 7")
    srd_off(A, SRD_W2, P_W1, f"s{S_T0}", 639 * 3456 + 128)
    A(f"s_cmp_lt_u32 s{S_H}, 27")
    A(f"s_cselect_b32 s{SRD_W2+2}, s{SRD_W2+2}, 0")
    T = V_TMP
    A(f"v_lshrrev_b32 v{T}, 3, v0")
    A(f"v_and_b32 v{T+1}, 6, v{T}")
    A(f"v_and_b32 v{T+2}, 7, v0")
    A(f"v_xor_b32 v{T+1}, v{T+1}, v{T+2}")
    A(f"v_mul_u32_u24 v{T+3}, 1280, v{T}")
    A(f"v_lshl_add_u32 v{V_VOFFA}, v{T+1}, 4, v{T+3}")
    A(f"s_lshl_b32 s{S_MA}, s{S_WAVE}, 13")
    A(f"s_lshl_b32 s{S_T0}, s{S_WAVE}, 3")
    A(f"v_add_u32 v{T}, s{S_T0}, v{T}")
    A(f"v_mul_u32_u24 v{T}, 3456, v{T}")
    A(f"s_and_b32 s{S_T0}, s{S_WAVE}, 1")
    A(f"s_lshl_b32 s{S_T1}, s{S_T0}, 2")
    A(f"v_bfe_u32 v{T+1}, v0, 4, 1")
    A(f"v_lshl_or_b32 v{T+1}, v{T+1}, 1, s{S_T1}")
    A(f"v_xor_b32 v{T+1}, v{T+1}, v{T+2}")
    A(f"v_lshl_add_u32 v{V_VOFF1}, v{T+1}, 4, v{T}")
    A(f"s_lshl_b32 s{S_MW2}, s{S_WAVE}, 10")
    A(f"s_add_u32 s{S_MW2}, s{S_MW2}, {W_BASE + 8192}")
    A(f"s_lshl_b32 s{S_T1}, s{S_T0}, 3")
    A(f"v_lshrrev_b32 v{T}, 4, v0")
    A(f"v_lshl_or_b32 v{T+1}, v{T}, 1, s{S_T1}")
    A(f"v_and_b32 v{T+2}, 15, v0")
    A(f"v_xor_b32 v{T+1}, v{T+1}, v{T+2}")
    A(f"s_lshl_b32 s{S_T1}, s{S_WAVE}, 3")
    A(f"v_add_u32 v{T}, s{S_T1}, v{T}")
    A(f"v_lshlrev_b32 v{T}, 13, v{T}")
    A(f"v_lshl_add_u32 v{V_VOFFW}, v{T+1}, 4, v{T}")
    A(f"s_lshl_b32 s{S_MW}, s{S_WAVE}, 11")
    A(f"s_add_u32 s{S_MW}, s{S_MW}, {W_BASE}")

def setup2(A):
    T = V_TMP
    A(f"v_and_b32 v{T}, 15, v0")
    A(f"v_lshlrev_b32 v{T}, 7, v{T}")
    A(f"v_add_u32 v{T}, s{S_MA}, v{T}")
    A(f"v_lshrrev_b32 v{T+1}, 4, v0")
    A(f"v_and_b32 v{T+2}, 6, v0")
    A(f"v_xor_b32 v{T+1}, v{T+1}, v{T+2}")
    A(f"v_lshl_add_u32 v{V_AADDR}, v{T+1}, 4, v{T}")
    A(f"v_xor_b32 v{V_AADDR+1}, 64, v{V_AADDR}")
    A(f"v_add_u32 v{V_AADDR+2}, {2*ACT_SLOT}, v{V_AADDR}")
    A(f"v_add_u32 v{V_AADDR+3}, {2*ACT_SLOT}, v{V_AADDR+1}")
    A(f"v_lshrrev_b32 v{T}, 4, v0")
    A(f"v_bfe_u32 v{T+1}, v0, 2, 2")
    A(f"v_lshl_add_u32 v{T+2}, v{T}, 3, v{T+1}")
    A(f"v_lshlrev_b32 v{T+4}, 8, v{T+2}")
    A(f"v_bfe_u32 v{T+3}, v0, 2, 3")
    A(f"v_lshl_add_u32 v{T+4}, v{T+3}, 5, v{T+4}")
    A(f"v_and_b32 v{T+3}, 3, v0")
    A(f"v_lshl_add_u32 v{T+4}, v{T+3}, 3, v{T+4}")
    A(f"v_add_u32 v{V_WQ}, {W_BASE}, v{T+4}")
    for n in range(1, 8): A(f"v_xor_b32 v{V_WQ+n}, {32*n}, v{V_WQ}")
    A(f"v_lshlrev_b32 v{T+4}, 7, v{T+2}")
    A(f"v_bfe_u32 v{T+5}, v0, 3, 2")
    A(f"v_lshl_add_u32 v{T+4}, v{T+5}, 5, v{T+4}")
    A(f"v_lshl_add_u32 v{T+4}, v{T+3}, 3, v{T+4}")
    A(f"v_add_u32 v{V_W1}, {W_BASE + 8192}, v{T+4}")
    for n in range(1, 4): A(f"v_xor_b32 v{V_W1+n}, {32*n}, v{V_W1}")
    A(f"v_lshlrev_b32 v{V_L16}, 4, v0")

def bias_load(A):
    A(f"s_lshl_b32 s{S_T0}, s{S_H}, 7")
    srd_off(A, SRD_X, P_B1, f"s{S_T0}", 128)
    A(f"s_cmp_lt_u32 s{S_H}, 27")
    A(f"s_cselect_b32 s{SRD_X+2}, s{SRD_X+2}, 0")
    A(f"v_lshrrev_b32 v{V_TMP+6}, 4, v0")
    A(f"v_lshlrev_b32 v{V_TMP+6}, 3, v{V_TMP+6}")
    for fb in range(4):
        A(f"buffer_load_dwordx2 {acch(2, fb).r(0,2)}, v{V_TMP+6}, s[{SRD_X}:{SRD_X+3}], 0 offen offset:{32*fb}")
def bias_unpack(A):
    for fb in range(4):
        src, d = acch(2, fb), acch(3, fb)
        A(f"v_lshlrev_b32 {d.r(0)}, 16, {src.r(0)}")
        A(f"v_and_b32 {d.r(1)}, 0xffff0000, {src.r(0)}")
        A(f"v_lshlrev_b32 {d.r(2)}, 16, {src.r(1)}")
        A(f"v_and_b32 {d.r(3)}, 0xffff0000, {src.r(1)}")

def act_dma(t, half, slot_shift=0):
    out = []
    for q in range(4):
        i = 4 * half + q
        sc = []
        if q == 0: sc.append(f"s_add_u32 m0, s{S_MA}, {ACT_BASE + ((t+slot_shift)%3)*ACT_SLOT + half*4096}")
        off = t * 128 + (i & 1) * 8 * 1280 - q * 1024
        sc.append(f"s_add_u32 s{S_SOFF}, s{S_RO + (i>>1)}, {off & 0xffffffff}")
        out.append((sc, f"buffer_load_dwordx4 v{V_VOFFA}, s[{SRD_A}:{SRD_A+3}], s{S_SOFF} offen offset:{q*1024} lds"))
    return out
def w_dma(st):
    out = []
    for q in range(2):
        sc = []
        if q == 0: sc.append(f"s_add_u32 m0, s{S_MW}, {(st%4)*W_SLOT}")
        sc.append(f"s_mov_b32 s{S_SOFF}, {(st*32 + 4*q)*8192 - q*1024}")
        out.append((sc, f"buffer_load_dwordx4 v{V_VOFFW}, s[{SRD_W}:{SRD_W+3}], s{S_SOFF} offen offset:{q*1024} lds"))
    out.append(([f"s_add_u32 m0, s{S_MW2}, {(st%4)*W_SLOT}", f"s_mov_b32 s{S_SOFF}, {st*32*3456}"],
                f"buffer_load_dwordx4 v{V_VOFF1}, s[{SRD_W2}:{SRD_W2+3}], s{S_SOFF} offen lds"))
    return out

def reads(st, slot_shift=0):
    set_ = st % 2; t, ks = st // 2, st % 2
    slot = (t + slot_shift) % 3
    r = []
    for qb in range(4):
        d = fr_act(set_, qb)
        if slot < 2: r.append(f"ds_read_b128 {d.r(0,4)}, v{V_AADDR+ks} offset:{slot*ACT_SLOT + qb*2048}")
        else: r.append(f"ds_read_b128 {d.r(0,4)}, v{V_AADDR+2+ks} offset:{qb*2048}")
    for cb in range(12):
        for sec in range(2):
            if cb < 8: r.append(f"ds_read_b64_tr_b16 {fr_w(set_, cb).r(2*sec, 2)}, v{V_WQ+cb} offset:{(st%4)*W_SLOT + sec*1024}")
            else:      r.append(f"ds_read_b64_tr_b16 {fr_w(set_, cb).r(2*sec, 2)}, v{V_W1+cb-8} offset:{(st%4)*W_SLOT + sec*512}")
    return r

def mfmas(st):
    set_ = st % 2
    out = []
    for cb in list(range(8, 12)) + list(range(8)):
        for qb in range(4):
            if cb < 8: out.append(mfma(accq(qb, cb), fr_w(set_, cb), fr_act(set_, qb), 0 if st == 0 else None))
            else:      out.append(mfma(acch(qb, cb-8), fr_w(set_, cb), fr_act(set_, qb), acch(3, cb-8) if st == 0 else None))
    return out

def place(gaps, rd, dm):
    n = len(gaps)
    dpos = [4 + 5 * i for i in range(len(dm))]
    g = 2
    for x in rd:
        while g in dpos: g += 1
        gaps[g].append(x); g += 1
    for (sc, ld), g in zip(dm, dpos):
        if len(sc) == 2: gaps[g - 1].insert(0, sc[0])
        gaps[g].insert(0, sc[-1]); gaps[g].append(ld)

QDST = 176
def epilogue(A, store_flags=""):
    T = V_TMP
    c0 = -2.0 * math.sqrt(2.0 / math.pi) * math.log2(math.e)
    c1 = c0 * 0.044715
    f2u = lambda x: hex(int.from_bytes(__import__("struct").pack("<f", x), "little"))
    A(f"s_mov_b32 s{S_T0}, {f2u(c1)}"); A(f"s_mov_b32 s{S_T1}, {f2u(c1)}")
    A(f"v_mov_b32 v{T}, {f2u(c0)}"); A(f"v_mov_b32 v{T+1}, {f2u(c0)}")
    A(f"s_mov_b32 s{S_T2}, {f2u(math.log2(math.e) / math.sqrt(128.0))}")
    A(f"s_mov_b32 s{S_T3}, s{S_T2}")
    A(f"s_lshl_b32 s{S_SOFF}, s{S_H}, 13")
    A(f"s_add_u32 s{S_SOFF}, s{S_SOFF}, {H_OFF}")
    srd_off(A, SRD_O, P_WS, f"s{S_SOFF}", 32 * 54 * 4096)
    A(f"s_cmp_lt_u32 s{S_H}, 27")
    A(f"s_cselect_b32 s{SRD_O+2}, s{SRD_O+2}, 0")
    for q in range(4):
        A(f"s_lshr_b32 s{S_RO+q}, s{S_ROW+q}, 2")
        A(f"s_mul_i32 s{S_RO+q}, s{S_RO+q}, {54*4096}")
        A(f"s_and_b32 s{S_SOFF}, s{S_ROW+q}, 3")
        A(f"s_lshl_b32 s{S_SOFF}, s{S_SOFF}, 10")
        A(f"s_add_u32 s{S_RO+q}, s{S_RO+q}, s{S_SOFF}")
    G = 208
    for qb in range(4):
        x = acch(qb, 0)
        for k in range(0, 16, 2): A(f"v_pk_mul_f32 v[{G+k}:{G+k+1}], {x.r(k,2)}, {x.r(k,2)}")
        for k in range(0, 16, 2): A(f"v_pk_fma_f32 v[{G+k}:{G+k+1}], v[{G+k}:{G+k+1}], s[{S_T0}:{S_T1}], v[{T}:{T+1}]")
        for k in range(0, 16, 2): A(f"v_pk_mul_f32 v[{G+k}:{G+k+1}], v[{G+k}:{G+k+1}], {x.r(k,2)}")
        for k in range(16): A(f"v_exp_f32 v{G+k}, v{G+k}")
        for k in range(0, 16, 2): A(f"v_pk_add_f32 v[{G+k}:{G+k+1}], v[{G+k}:{G+k+1}], 1.0 op_sel_hi:[1,0]")
        for k in range(16): A(f"v_rcp_f32 v{G+k}, v{G+k}")
        for k in range(0, 16, 2): A(f"v_pk_mul_f32 v[{G+k}:{G+k+1}], v[{G+k}:{G+k+1}], {x.r(k,2)}")
        for k in range(8): A(f"v_cvt_pk_bf16_f32 {x.r(k)}, v{G+2*k}, v{G+2*k+1}")
        A(f"buffer_store_dwordx4 {x.r(0,4)}, v{V_L16}, s[{SRD_O}:{SRD_O+3}], s{S_RO+qb} offen{store_flags}")
        A(f"s_add_u32 s{S_RO+qb}, s{S_RO+qb}, 4096")
        A(f"buffer_store_dwordx4 {x.r(4,4)}, v{V_L16}, s[{SRD_O}:{SRD_O+3}], s{S_RO+qb} offen{store_flags}")
    for qb in range(4):
        x = accq(qb, 0)
        for k in range(0, 32, 2): A(f"v_pk_mul_f32 {x.r(k,2)}, {x.r(k,2)}, s[{S_T2}:{S_T3}]")
        for k in range(16): A(f"v_cvt_pk_bf16_f32 v{QDST+16*qb+k}, {x.r(2*k)}, {x.r(2*k+1)}")

def body(A):
    setup(A)
    bias_load(A)
    emit_dma(A, act_dma(0, 0) + act_dma(0, 1) + w_dma(0) + w_dma(1))
    emit_dma(A, act_dma(1, 0) + act_dma(1, 1) + w_dma(2) + w_dma(3))
    emit_dma(A, act_dma(2, 0))
    setup2(A)
    A.label("L_p1b_main")
    A("s_waitcnt vmcnt(21)")
    bias_unpack(A)
    A("s_barrier")
    stamp(A)
    A(reads(0))
    cnt = {}
    for st in range(NST):
        dm = []
        if st + 4 < NST: dm += w_dma(st + 4)
        if st == 0: dm += act_dma(2, 1)
        else:
            t = (st - 1) // 2 + 3
            if t < NST // 2: dm += act_dma(t, (st - 1) % 2)
        gaps = [[] for _ in range(48)]
        if st + 1 < NST:
            if st == 0: n = 18
            elif st == 1: n = 3 + 4 + cnt[0]
            elif st == 2: n = 4 + cnt[0] + cnt[1]
            else: n = cnt[st - 1] + cnt[st - 2]
            gaps[0].append(f"s_waitcnt vmcnt({n})")
            gaps[1].append("s_barrier")
            place(gaps, reads(st + 1), dm)
        cnt[st] = len(dm)
        A("s_waitcnt lgkmcnt(0)")
        if st in (10,): stamp(A)
        A(weave(mfmas(st), gaps))
    stamp(A)
```

```python
from common import *
V_L16 = 4
NB = 6
def accB(cb, rb): return Reg("v", 16 + 4 * (rb * 5 + cb))
def accA(cb, rb): return Reg("v", 96 + 4 * (rb * 5 + cb))
def fa(b, rb): return Reg("a", 36 * b + 4 * rb)
def fw(b, cb): return Reg("a", 36 * b + 16 + 4 * cb)
S_RT, S_CT = 74, 75
S_OA, S_OW = 76, 77
NF, NO = 14, 32

def setup(A):
    A(f"s_and_b32 s{S_T0}, s2, 7")
    A(f"s_lshr_b32 s{S_T1}, s2, 3")
    A(f"s_lshr_b32 s{S_RT}, s{S_T0}, 1")
    A(f"s_lshl_b32 s{S_RT}, s{S_RT}, 3")
    A(f"s_lshr_b32 s{S_T2}, s{S_T1}, 2")
    A(f"s_add_u32 s{S_RT}, s{S_RT}, s{S_T2}")
    A(f"s_and_b32 s{S_CT}, s{S_T0}, 1")
    A(f"s_lshl_b32 s{S_CT}, s{S_CT}, 2")
    A(f"s_and_b32 s{S_T2}, s{S_T1}, 3")
    A(f"s_add_u32 s{S_CT}, s{S_CT}, s{S_T2}")
    A(f"s_mul_i32 s{S_T0}, s{S_RT}, {54*4096}")
    A(f"s_add_u32 s{S_T0}, s{S_T0}, {H_OFF}")
    srd_off(A, SRD_A, P_WS, f"s{S_T0}", 54 * 4096)
    A(f"s_mul_i32 s{S_T0}, s{S_CT}, {54*5120}")
    A(f"s_add_u32 s{S_T0}, s{S_T0}, {W2P_OFF}")
    srd_off(A, SRD_W, P_WS, f"s{S_T0}", 54 * 5120)
    A(f"s_lshl_b32 s{S_T0}, s{S_RT}, 19")
    A(f"s_add_u32 s{S_T0}, s{S_T0}, {CTX_OFF}")
    srd_off(A, SRD_O, P_WS, f"s{S_T0}", 128 * 4096)
    A(f"s_mul_i32 s{S_T0}, s{S_CT}, {128*5120}")
    A(f"s_add_u32 s{S_T0}, s{S_T0}, {WOP_OFF}")
    srd_off(A, SRD_W2, P_WS, f"s{S_T0}", 128 * 5120)
    A(f"v_lshlrev_b32 v{V_L16}, 4, v0")
    A(f"s_lshl_b32 s{S_T0}, s{S_WAVE}, 12")
    A(f"v_add_u32 v5, s{S_T0}, v{V_L16}")
    A(f"s_mul_i32 s{S_T0}, s{S_WAVE}, 5120")
    A(f"v_add_u32 v6, s{S_T0}, v{V_L16}")
    A(f"v_add_u32 v7, 4096, v6")

def loads(it):
    b = it % NB
    ffn = it < NF
    n = it if ffn else it - NF
    sa, sw = (SRD_A, SRD_W) if ffn else (SRD_O, SRD_W2)
    out = []
    for cb in range(5):
        sc = [f"s_mov_b32 s{S_OW}, {n*20480}"] if cb == 0 else []
        out.append((sc, f"buffer_load_dwordx4 {fw(b, cb).r(0,4)}, v{6 if cb < 4 else 7}, s[{sw}:{sw+3}], s{S_OW} offen offset:{(cb%4)*1024}"))
    for rb in range(4):
        sc = [f"s_mov_b32 s{S_OA}, {n*16384}"] if rb == 0 else []
        out.append((sc, f"buffer_load_dwordx4 {fa(b, rb).r(0,4)}, v5, s[{sa}:{sa+3}], s{S_OA} offen offset:{rb*1024}"))
    return out

def body(A):
    setup(A)
    A(f"s_lshl_b32 s{S_T0}, s{S_RT}, 8")
    A(f"s_add_u32 s{S_T0}, s{S_T0}, {G_OFF}")
    srd_off(A, SRD_X, P_WS, f"s{S_T0}", 256)
    A("v_and_b32 v8, 15, v0")
    A("v_lshlrev_b32 v8, 2, v8")
    for rb in range(4): A(f"buffer_load_dword v{176+rb}, v8, s[{SRD_X}:{SRD_X+3}], 0 offen offset:{64*rb}")
    A(f"s_lshl_b32 s{S_T0}, s{S_WAVE}, 6")
    A(f"buffer_load_dword v180, v8, s[{SRD_X}:{SRD_X+3}], s{S_T0} offen")
    A(f"s_mul_i32 s{S_T0}, s{S_CT}, 160")
    srd_off(A, SRD_O2, P_B2, f"s{S_T0}", 160)
    A("v_lshrrev_b32 v9, 4, v0")
    A("v_lshlrev_b32 v9, 3, v9")
    for cb in range(5): A(f"buffer_load_dwordx2 v[{184+2*cb}:{185+2*cb}], v9, s[{SRD_O2}:{SRD_O2+3}], 0 offen offset:{32*cb}")
    N = NF + NO
    for it in range(NB - 1):
        for sc, ld in loads(it): A(sc); A(ld)
    A.label("L_p3_main")
    for it in range(N):
        b = it % NB
        acc = accB if it < NF else accA
        first = it in (0, NF)
        mf = [mfma(acc(cb, rb), fw(b, cb), fa(b, rb), 0 if first else None) for rb in range(4) for cb in range(5)]
        gaps = [[] for _ in mf]
        nx = it + NB - 1
        if nx < N:
            for k, (sc, ld) in enumerate(loads(nx)): gaps[2 * k] += sc + [ld]
        A(f"s_waitcnt vmcnt({9 * min(NB - 2, N - 1 - it)})")
        if it == NF: stamp(A)
        A(weave(mf, gaps))
    stamp(A)
    A(f"s_mul_i32 s{S_T0}, s{S_WAVE}, 20480")
    A(f"v_add_u32 v10, s{S_T0}, v{V_L16}")
    A(f"s_mul_i32 s{S_T0}, s{S_WAVE}, 5120")
    A(f"v_add_u32 v11, s{S_T0}, v{V_L16}")
    A("s_nop 4")
    for rb in range(4):
        for cb in range(5):
            a_, b_ = accA(cb, rb), accB(cb, rb)
            for k in range(4): A(f"v_sub_f32 {a_.r(k)}, {a_.r(k)}, {b_.r(k)}")
            for k in range(4): A(f"v_fma_f32 {a_.r(k)}, {a_.r(k)}, v{176+rb}, {b_.r(k)}")
            A(f"ds_write_b128 v10, {a_.r(0,4)} offset:{(rb*5+cb)*1024}")
    A("s_waitcnt lgkmcnt(0)")
    A("s_barrier")
    A("v_add_u32 v12, 40960, v11")
    for w in range(4):
        for cb in range(5):
            A(f"ds_read_b128 v[{16+20*w+4*cb}:{19+20*w+4*cb}], v{11 + w//2} offset:{(w%2)*20480 + cb*1024}")
    A(f"s_lshl_b32 s{S_T0}, s{S_RT}, 2")
    A(f"s_add_u32 s{S_T0}, s{S_T0}, s{S_WAVE}")
    A(f"s_mul_i32 s{S_T0}, s{S_T0}, {16*1280}")
    A(f"s_mul_i32 s{S_T1}, s{S_CT}, 160")
    A(f"s_add_u32 s{S_T0}, s{S_T0}, s{S_T1}")
    srd(A, SRD_X, f"s{P_OUT}", f"s{P_OUT+1}", 2048 * 1280)
    A("v_and_b32 v8, 15, v0")
    A("v_mul_u32_u24 v8, 1280, v8")
    A("v_add_u32 v8, v8, v9")
    A("v_sub_f32 v180, 1.0, v180")
    for cb in range(5):
        A(f"v_lshlrev_b32 v{200+4*cb}, 16, v{184+2*cb}"); A(f"v_and_b32 v{201+4*cb}, 0xffff0000, v{184+2*cb}")
        A(f"v_lshlrev_b32 v{202+4*cb}, 16, v{185+2*cb}"); A(f"v_and_b32 v{203+4*cb}, 0xffff0000, v{185+2*cb}")
    A("s_waitcnt lgkmcnt(0)")
    for k in range(20):
        A(f"v_add_f32 v{16+k}, v{16+k}, v{36+k}")
        A(f"v_add_f32 v{56+k}, v{56+k}, v{76+k}")
        A(f"v_fma_f32 v{16+k}, v{200+k}, v180, v{16+k}")
        A(f"v_add_f32 v{16+k}, v{16+k}, v{56+k}")
    for cb in range(5):
        A(f"v_cvt_pk_bf16_f32 v{16+4*cb}, v{16+4*cb}, v{17+4*cb}")
        A(f"v_cvt_pk_bf16_f32 v{17+4*cb}, v{18+4*cb}, v{19+4*cb}")
        A(f"buffer_store_dwordx2 v[{16+4*cb}:{17+4*cb}], v8, s[{SRD_X}:{SRD_X+3}], s{S_T0} offen offset:{32*cb}")
    stamp(A)
    A.label("L_p3_end")
```

```python
import sys
from common import *
import p1a, p1b, attn, misc, p3
HDR = open("gated_mix__compressed_kv_cla__dense_activation_gelu__prompt.s.ref").read().split("; Override launch")[0]
def k2(A):
    stamp(A)
    code_prefetch(A, "L_p1b_main", "L_k2_end-L_p1b_main", 238, maxbytes=65536)
    A("s_waitcnt lgkmcnt(0)")
    p1b.body(A)
    A("s_barrier")
    attn.prologue_loads(A)
    p1b.epilogue(A)
    attn.init_regs(A)
    stamp(A)
    paths = []
    attn.main(A, paths)
    n = len(A.lines)
    stamp(A)
    attn.epilogue(A)
    stamp(A)
    A.label("L_k2_end")
    return [p + A.lines[n:] for p in paths]
def k0(A):
    A("s_waitcnt lgkmcnt(0)")
    A("v_lshlrev_b32 v4, 4, v0")
    misc.wpack_issue(A, 0, 4, 2)
    misc.gate_issue(A, 8, 16, 56)
    A("s_waitcnt vmcnt(0)")
    A("s_barrier")
    misc.gate_finish(A, 8, 16, 56)
    misc.wpack_finish(A, 0, 4, 12, Reg("v", 100), 2)
def k3(A):
    stamp(A)
    code_prefetch(A, "L_p3_main", "L_p3_end-L_p3_main", 238)
    A("s_waitcnt lgkmcnt(0)")
    p3.body(A)
def build(which):
    launches, code, kds = [], [], []
    def add(name, fn, lds):
        A = Asm()
        kernel_entry(A, f"L_end_{name}")
        paths = fn(A)
        stamp_flush(A)
        A.label(f"L_end_{name}")
        A("s_endpgm")
        for pth in (paths or [A.lines]): check_stream(pth, name)
        launches.append(f"; @launch kernel={name} grid=(256,1,1) block=(256,1,1) lds={lds}")
        code.append(khead(name) + A.text()); kds.append(kd(name))
    if "k0" in which: add("k0_kernel", k0, 40960)
    if "k1" in which: add("k1_kernel", p1a.body, 163840)
    if "k2" in which: add("k2_kernel", k2, 163840)
    if "k3" in which: add("k3_kernel", k3, 81920)
    return HDR + "\n".join(launches) + '\n.amdgcn_target "amdgcn-amd-amdhsa--gfx950"\n' + "".join(code) + "".join(kds)
if __name__ == "__main__":
    out = sys.argv[1]
    open(out, "w").write(build(sys.argv[2].split(",")))
```

```python
import re

class Asm:
    def __init__(self):
        self.lines = []
    def __call__(self, s):
        if isinstance(s, (list, tuple)):
            for x in s: self(x)
            return
        for ln in s.split("\n"):
            ln = ln.strip()
            if ln: self.lines.append(ln)
    def label(self, name): self.lines.append(name + ":")
    def text(self):
        out = []
        for ln in self.lines:
            if ln.endswith(":") or ln.startswith("."): out.append(ln)
            else: out.append("  " + ln)
        return "\n".join(out) + "\n"

def R(kind, n, cnt=1):
    return f"{kind}{n}" if cnt == 1 else f"{kind}[{n}:{n+cnt-1}]"
def v(n, cnt=1): return R("v", n, cnt)
def a(n, cnt=1): return R("a", n, cnt)
def s(n, cnt=1): return R("s", n, cnt)

class Reg:
    def __init__(self, kind, n): self.kind, self.n = kind, n
    def r(self, off=0, cnt=1): return R(self.kind, self.n + off, cnt)
    def __add__(self, k): return Reg(self.kind, self.n + k)
    def __repr__(self): return f"{self.kind}{self.n}"

def mfma(d, A, B, c=None):
    cs = d.r(0, 4) if c is None else ("0" if c == 0 else c.r(0, 4))
    return f"v_mfma_f32_16x16x32_bf16 {d.r(0,4)}, {A.r(0,4)}, {B.r(0,4)}, {cs}"

def is_scalar(ins):
    return ins.startswith("s_")
def is_mem(ins):
    return ins.startswith(("ds_", "buffer_", "global_"))
def is_trans(ins):
    return ins.startswith(("v_exp_f32", "v_rcp_f32", "v_log_f32", "v_rsq_f32", "v_sqrt_f32"))

def weave(mf, gaps):
    out = []
    for m, g in zip(mf, gaps):
        out.append(m); out.extend(g)
    return out

def gap_cost(g):
    t = 4
    prev_valu = False
    for i, ins in enumerate(g):
        if ins.endswith(":"): continue
        if is_scalar(ins):
            t += 4; prev_valu = False
        else:
            t = max(t, 8)
            if is_mem(ins) and prev_valu: t += 8
            t += 8 if is_trans(ins) else 4
            prev_valu = not is_mem(ins)
    return max(16, t)

_reg = re.compile(r"\b([vas])(\d+)\b|\b([vas])\[(\d+):(\d+)\]")
def regs_of(op):
    out = []
    for m in _reg.finditer(op):
        if m.group(1): out.append((m.group(1), int(m.group(2))))
        else: out.extend((m.group(3), i) for i in range(int(m.group(4)), int(m.group(5)) + 1))
    if re.search(r"\bvcc\b", op): out.append(("s", "vcc"))
    if re.search(r"\bm0\b", op): out.append(("s", "m0"))
    if re.search(r"\bexec\b", op): out.append(("s", "exec"))
    return out

def split_ops(rest):
    ops, depth, cur = [], 0, ""
    for ch in rest:
        if ch in "[(": depth += 1
        if ch in "])": depth -= 1
        if ch == "," and depth == 0: ops.append(cur.strip()); cur = ""
        else: cur += ch
    if cur.strip(): ops.append(cur.strip())
    return ops

class Ins:
    def __init__(self, text):
        self.text = text
        t = text.split(";")[0].strip()
        p = t.split(None, 1)
        self.mn = p[0]; ops = split_ops(p[1]) if len(p) > 1 else []
        self.ops = ops
        mn = self.mn
        self.kind = None; self.w = []; self.r = []; self.srcc = []
        self.lds_dma = False
        if mn.startswith(("v_mfma", "v_smfmac")):
            self.kind = "mfma"
            self.w = regs_of(ops[0]); self.ra = regs_of(ops[1]) + regs_of(ops[2])
            if mn.startswith("v_smfmac"):
                self.srcc = regs_of(ops[0]); self.ra += regs_of(ops[3])
            else:
                self.srcc = regs_of(ops[3])
            self.r = self.ra + self.srcc
            self.passes = 8 if "32x32" in mn else 4
        elif mn.startswith("v_"):
            self.kind = "valu"
            if mn.startswith("v_nop"): return
            nd = 2 if mn.startswith(("v_add_co", "v_addc_co", "v_sub_co", "v_div_scale")) else 1
            for o in ops[:nd]: self.w += regs_of(o)
            for o in ops[nd:]: self.r += regs_of(o)
            if mn.startswith(("v_fmac", "v_dot2c", "v_pk_fmac", "v_writelane")): self.r += regs_of(ops[0])
            if mn.startswith(("v_permlane32_swap", "v_permlane16_swap", "v_swap")):
                self.r += regs_of(ops[0]); self.w += regs_of(ops[1])
            if "dpp" in t or "row_" in t or "quad_perm" in t: self.dpp = True
        elif mn.startswith("ds_"):
            self.kind = "ds"
            if mn.startswith(("ds_read", "ds_bpermute", "ds_permute", "ds_swizzle")):
                self.w = regs_of(ops[0])
                for o in ops[1:]: self.r += regs_of(o)
            else:
                for o in ops: self.r += regs_of(o)
        elif mn.startswith(("buffer_", "global_")):
            self.kind = "vmem"
            if mn.startswith(("buffer_inv", "buffer_wbl2")): return
            if re.search(r"\blds\b", t):
                self.lds_dma = True
                for o in ops: self.r += regs_of(o)
                self.r.append(("s", "m0"))
            elif "load" in mn:
                self.w = regs_of(ops[0])
                for o in ops[1:]: self.r += regs_of(o)
            elif "atomic" in mn and re.search(r"\bsc0\b", t) and mn.startswith("buffer"):
                self.w = regs_of(ops[0])
                for o in ops: self.r += regs_of(o)
            else:
                for o in ops: self.r += regs_of(o)
                self.store_data = regs_of(ops[0] if mn.startswith("buffer") else ops[1])
        elif mn.startswith("s_"):
            self.kind = "salu"
            if mn.startswith(("s_load", "s_memtime", "s_memrealtime", "s_buffer_load")):
                self.kind = "smem"
                self.w = regs_of(ops[0])
                for o in ops[1:]: self.r += regs_of(o)
            elif mn.startswith(("s_waitcnt", "s_nop", "s_barrier", "s_branch", "s_cbranch", "s_endpgm", "s_setprio", "s_sleep")):
                pass
            elif mn.startswith(("s_cmp", "s_bitcmp")):
                for o in ops: self.r += regs_of(o)
            else:
                self.w = regs_of(ops[0])
                for o in ops[1:]: self.r += regs_of(o)
                if mn.startswith(("s_addk", "s_mulk")): self.r += regs_of(ops[0])
        else:
            raise ValueError("unknown instruction " + text)
    def states(self):
        if self.mn == "s_nop": return int(self.ops[0], 0) + 1
        return 1

def check_stream(lines, name="", verbose=True):
    ins = [Ins(l) for l in lines if not (l.endswith(":") or l.startswith("."))]
    probs = []
    def P(i, msg): probs.append(f"[{name}] #{i} '{ins[i].text}': {msg}")
    pos = []; p = 0
    for x in ins: pos.append(p); p += x.states()
    for i, c in enumerate(ins):
        rs, ws = set(c.r), set(c.w)
        for j in range(i - 1, max(-1, i - 24), -1):
            pr = ins[j]
            dist = pos[i] - pos[j] - pr.states()
            if dist >= 20: break
            pw = set(pr.w)
            if pr.kind == "mfma":
                n = pr.passes
                if c.kind == "mfma":
                    if pw & set(c.ra) and dist < n + 4: P(i, f"mfma D->A/B dist {dist} (#{j})")
                    ov = pw & set(c.srcc)
                    if ov and not (set(c.srcc) == pw and c.passes == n and c.mn == pr.mn) and dist < n + 2: P(i, f"mfma D->C overlap dist {dist} (#{j})")
                    if (pw & ws) and not ov and dist < n + 2: P(i, f"mfma WAW dist {dist} (#{j})")
                elif c.kind in ("valu", "ds", "vmem"):
                    if (pw & (rs | ws)) and dist < n + 4: P(i, f"mfma D->use dist {dist} (#{j})")
                    if c.kind == "valu" and (set(pr.srcc) & ws) and dist < n - 1: P(i, f"mfma C WAR dist {dist} (#{j})")
            if pr.kind == "valu":
                pv = {x for x in pw if x[0] in "va"}; ps = {x for x in pw if x[0] == "s"}
                if c.kind == "mfma" and (pv & rs) and dist < 2: P(i, f"valu->mfma dist {dist} (#{j})")
                if c.kind == "mfma" and ("s", "exec") in pw and dist < 4: P(i, "exec->mfma")
                if is_trans(pr.mn) and c.kind == "valu" and not is_trans(c.mn) and (pv & rs) and dist < 1: P(i, f"trans->valu (#{j})")
                if c.kind == "valu" and c.mn.startswith(("v_readfirstlane", "v_readlane")) and (pv & rs) and dist < 1: P(i, "valu->readlane")
                if c.kind == "valu" and c.mn.startswith("v_permlane") and (pv & rs) and dist < 2: P(i, "valu->permlane")
                if c.kind == "valu" and getattr(c, "dpp", False) and (pv & rs) and dist < 2: P(i, "valu->dpp")
                if c.kind == "valu" and (ps & rs) and dist < 2: P(i, f"valu sgpr->valu dist {dist}")
                if c.kind == "vmem" and (ps & rs) and dist < 5: P(i, f"valu sgpr->vmem dist {dist}")
            if pr.kind == "salu" and ("s", "m0") in pw and c.lds_dma and dist < 1: P(i, "m0->dma")
            if pr.kind == "vmem" and len(getattr(pr, "store_data", [])) >= 3:
                if (set(pr.store_data) & ws) and dist < (2 if c.kind in ("valu", "mfma") else 1): P(i, f"store data WAR dist {dist}")
    vm, lg = [], []
    for i, c in enumerate(ins):
        if c.mn == "s_waitcnt":
            t = c.text
            m = re.search(r"vmcnt\((\d+)\)", t)
            if m:
                n = int(m.group(1)); vm = vm[len(vm) - n:] if n < len(vm) and n > 0 else ([] if n == 0 else vm)
            m = re.search(r"lgkmcnt\((\d+)\)", t)
            if m:
                n = int(m.group(1))
                if n > 0 and any(ins[j].kind == "smem" for j, _ in lg): P(i, "counted lgkmcnt with smem outstanding")
                lg = lg[len(lg) - n:] if n < len(lg) and n > 0 else ([] if n == 0 else lg)
            continue
        touched = set(c.r) | set(c.w)
        for lst, nm in ((vm, "vmcnt"), (lg, "lgkmcnt")):
            for j, d in lst:
                if d & touched:
                    if (d & set(c.r)) or c.kind != ins[j].kind: P(i, f"uses result of #{j} '{ins[j].text}' before {nm} wait")
        if c.kind == "vmem":
            vm.append((i, set(c.w)))
            if len(vm) > 63: P(i, "vmcnt overflow")
        if c.kind in ("ds", "smem"):
            lg.append((i, set(c.w)))
    if verbose:
        for q in probs[:40]: print(q)
        if len(probs) > 40: print("...", len(probs), "problems")
    return probs

def is_vmem(ins): return ins.startswith(("buffer_", "global_"))
class Sched:
    def __init__(self, mf):
        self.mf = list(mf)
        self.g = [{"s": [], "m": [], "v": []} for _ in mf]
        self.tail = []
    def block(self, j):
        self.g[j]["b"] = 1
    def hasvm(self, j): return 0 <= j < len(self.g) and any(is_vmem(x) for x in self.g[j]["m"])
    def hasst(self, j): return 0 <= j < len(self.g) and any(x.startswith("buffer_store_dwordx") for x in self.g[j]["m"])
    def used(self, j):
        g = self.g[j]
        return g.get("b", 0) + sum(2 if is_vmem(x) else 1 for x in g["m"]) + sum(2 if is_trans(x) else 1 for x in g["v"]) + max(0, len(g["s"]) - 1)
    def empty(self, j):
        g = self.g[j]
        return not (g["s"] or g["m"] or g["v"] or g.get("b"))
    def put_s(self, ins, lo=0):
        for j in range(lo, len(self.g)):
            if not self.g[j]["s"] and not self.hasvm(j):
                self.g[j]["s"].append(ins); return j
        self.tail.append(ins); return len(self.g)
    def put_m(self, ins, lo=0, sc=(), maxm=1, reach=6):
        j = lo
        for x in sc:
            j = self.put_s(x, j) + 1
        n = len(self.g)
        if is_vmem(ins):
            st = ins.startswith("buffer_store_dwordx")
            ok = lambda k: not (self.hasst(k - 1) or self.hasst(k - 2)) and not (st and (self.hasvm(k + 1) or self.hasvm(k + 2)))
            for k in range(j, min(n, j + reach)):
                if self.empty(k) and ok(k):
                    self.g[k]["m"].append(ins); return k
            for k in range(j, n):
                g = self.g[k]
                if not self.hasvm(k) and ok(k) and self.used(k) + min(1, len(g["s"])) <= 1:
                    g["m"].append(ins); return k
        else:
            for k in range(j, n):
                if len(self.g[k]["m"]) < maxm and self.used(k) < 2:
                    self.g[k]["m"].append(ins); return k
        if self.tail and " m0," in self.tail[-1]: self.tail.append("s_nop 0")
        self.tail.append(ins); return n
    def put_v(self, ins, lo=0, cap=2):
        need = 2 if is_trans(ins) else 1
        for k in range(lo, len(self.g)):
            if self.used(k) + need <= cap:
                self.g[k]["v"].append(ins); return k
        self.tail.append(ins); return len(self.g)
    def put_grp(self, grp, lo=0):
        for j in range(lo, len(self.g)):
            if not self.g[j]["s"] and not self.hasvm(j) and self.used(j) + len(grp) - 1 <= 2:
                self.g[j]["s"] += list(grp); return j
        self.tail += list(grp); return len(self.g)
    def put_seq(self, lst, lo=0, cap=2):
        j = lo; last = None
        for x in lst:
            if isinstance(x, tuple):
                if last: j += 1
                j = self.put_grp(x, j); last = "s"
            elif is_scalar(x):
                if last: j += 1
                j = self.put_s(x, j); last = "s"
            elif is_mem(x):
                if last in ("v", "m") or (last and is_vmem(x)): j += 1
                j = self.put_m(x, j); last = "m"
            else:
                j = self.put_v(x, j, cap); last = "v"
        return j
    def emit(self):
        out = []
        for m, g in zip(self.mf, self.g):
            out.append(m); out += g["s"] + g["m"] + g["v"]
        return out + self.tail
    def cost(self):
        t = 4 * len(self.tail)
        for j, g in enumerate(self.g):
            items = [x for x in g["s"] + g["m"] + g["v"] if not x.endswith(":")]
            if self.hasvm(j):
                c = 16 + sum(8 if is_trans(x) else 4 for x in items) - 4 + 4 * g.get("b", 0)
                if self.hasst(j): c += 16
                if self.hasst(j - 1): c += 28
            else:
                c = gap_cost((["v_nop"] if False else []) + items)
                if g.get("b"): c = max(c, 12 + sum(8 if is_trans(x) else 4 for x in g["m"] + g["v"]))
                if len(g["m"]) > 1: c += 4 * (len(g["m"]) - 1)
            t += c
        return t

def tag(ins, t): return f"{ins} ;@{t}"
def resolve_waits(lines):
    out = []; vm = []
    for ln in lines:
        if ln.startswith("s_waitvm"):
            tags = ln.split()[1].split(",")
            last = -1
            for t in tags:
                idx = [i for i, x in enumerate(vm) if x == t]
                assert idx, f"no op tagged {t}"
                last = max(last, idx[-1])
            n = len(vm) - 1 - last
            assert n <= 63
            out.append(f"s_waitcnt vmcnt({n})")
            continue
        if ln.startswith(("buffer_", "global_")):
            t = ln.split(";@")[1].strip() if ";@" in ln else None
            vm.append(t)
            ln = ln.split(";@")[0].rstrip()
        out.append(ln)
    return out

def group_scc(lines):
    out = []; i = 0
    uses = ("s_addc", "s_cselect", "s_subb", "s_cbranch", "L_")
    while i < len(lines):
        x = lines[i]
        if is_scalar(x) and i + 1 < len(lines) and lines[i + 1].startswith(uses):
            g = [x]; i += 1
            while i < len(lines) and lines[i].startswith(uses): g.append(lines[i]); i += 1
            out.append(tuple(g))
        else:
            assert not x.startswith(uses), x
            out.append(x); i += 1
    return out
```

```python
from fcommon import *
QDST = 176

RING = 4
DIST = 2
V_RA, V_RB, V_IDX = 5, 6, 7
V_Z, V_ONE, V_POLL, V_PADR = 10, 11, 4, 8
S_RD, S_WR, S_SRC, S_CNT, S_W8, S_JMP = S_KST, S_VST, S_MW, S_MW1, S_MA, S_GOFF
S_PUB, S_PUB2 = S_X0, S_MWQ
PUB_ADV = [f"s_mov_b32 s{S_PUB}, s{S_PUB2}", f"s_mov_b32 s{S_PUB2}, {BIG}"]
K0_LDS = 98304
S0, S1, L0, L1 = 0, 1, 2, 3
def O(q, db): return Reg("v", 16 + 32 * q + 4 * db)
def SB(b): return Reg("v", 144 + 8 * b)
def Q(q, ds): return Reg("v", QDST + 16 * q + 4 * ds)
def PB(b): return Reg("v", 240 + 4 * b)
def KF(set_, f): return Reg("a", 64 * set_ + 4 * f)
def VF(set_, f): return Reg("a", 96 - 64 * set_ + 4 * f)
def LS(pair): return Reg("a", 224 + 4 * pair)
SEL_BOTH, SEL_HI = Reg("a", 232), Reg("a", 236)
def MASK(par): return Reg("a", 240 + 8 * par)

class G:
    def __init__(self, q, u, masked=False, sb=None, pb=None, sumsel=None, reads=(), first=False):
        self.q, self.u, self.masked, self.first = q, u, masked, first
        self.sb = q if sb is None else sb
        self.pb = q if pb is None else pb
        self.sumsel = sumsel
        self.reads = list(reads)
def rd(kind, u, f0=0, f1=8): return [(kind, u, f) for f in range(f0, f1)]

def read_ins(kind, u, f):
    if kind == "V":
        reg, off, dst = (V_RA, 0, VF(0, f)) if u % 2 == 0 else (V_RB, 16384, VF(1, f))
    else:
        reg, off, dst = (V_RA, 8192, KF(1, f)) if u % 2 == 1 else (V_RB, 24576, KF(0, f))
    return f"ds_read_b128 {dst.r(0,4)}, v{reg} offset:{off + 1024*f}"

def dma_list(t=None):
    out = []
    for i in range(8):
        sc = []
        if i == 0: sc = [f"s_add_u32 m0, s{S_WR}, s{S_W8}"]
        if i == 4: sc = [f"s_add_u32 m0, m0, 4096", f"s_add_u32 s{S_SRC}, s{S_SRC}, 4096"]
        ld = f"buffer_load_dwordx4 v{V_L16}, {sr(R_KVL)}, s{S_SRC} offen offset:{(i%4)*1024}{SC1} lds"
        out.append((sc, tag(ld, t) if t else ld))
    return out
def src_adv(jump):
    seq = [f"s_add_u32 s{S_SRC}, s{S_SRC}, {32768 - 4096}"]
    if jump: seq += [(f"s_cmp_eq_u32 s{S_SRC}, s{S_JMP}", f"s_cselect_b32 s{S_T0}, 0x10000, 0"), f"s_add_u32 s{S_SRC}, s{S_SRC}, s{S_T0}"]
    return seq + ring_adv(S_WR)
def ring_adv(r): return [f"s_add_u32 s{r}, s{r}, 32768", f"s_and_b32 s{r}, s{r}, 0x1ffff"]
def mask_load(sb, par): return [f"v_accvgpr_read_b32 {SB(sb).r(k)}, {MASK(par).r(k)}" for k in range(8)]
RB_UPD = f"v_add_u32 v{V_RB}, s{S_RD}, v{V_L16}"
RA_UPD = f"v_add_u32 v{V_RA}, s{S_RD}, v{V_L16}"
def pub_mid():
    return f"buffer_atomic_add v{V_ONE}, v{V_Z}, {sr(R_WS)}, s{S_PUB} offen{SC1}"
def mid_poll(so=None): return f"buffer_load_dword v{V_POLL}, v{V_PADR}, {sr(R_WS)}, s{S_W0 if so is None else so} offen{SC1}"
def poll_enable(n): return (f"s_cmp_eq_u32 s{S_CNT}, {n}", f"s_cselect_b32 s{S_T1}, s{S_W0}, {BIG}")

RUN = int(os.environ.get('RUN', '4'))
class Region:
    def __init__(self, groups, start=False, final=False):
        self.start, self.final = start, final
        N = G(None, 0)
        seq = ([N, N] if start else [G(L0, -1), G(L1, -1, sumsel="both")]) + groups
        mf, fill, self.g0, self.odd, self.sm = [], [], [], [], []
        for gi, cur in enumerate(groups):
            e, pv = seq[gi + 1], seq[gi]
            self.g0.append(len(mf))
            if cur.q is None: fill.append((len(mf) - 1, "s_nop 1"))
            odd = []; sm = None
            qk = [mfma(SB(cur.sb) + 4 * (i // 4), KF(cur.u % 2, i), Q(cur.q, i % 4), None if (i % 4 > 0 or cur.masked) else 0) for i in range(8)] if cur.q is not None else []
            pvm = [mfma(O(pv.q, i), VF(pv.u % 2, i), PB(pv.pb), 0 if pv.first else None) for i in range(8)] if pv.q is not None else []
            both = bool(qk and pvm)
            if not both: order = qk + pvm
            else:
                order = []
                for i in range(0, 8, RUN): order += qk[i:i + RUN] + pvm[i:i + RUN]
            for i in range(8):
                mf.append(order.pop(0)); a = len(mf) - 1
                if both: mf.append(order.pop(0))
                if e.q is not None:
                    fill.append((a, f"v_exp_f32 {SB(e.sb).r(i)}, {SB(e.sb).r(i)}"))
                    if i % 2 == 1:
                        if not both: fill.append((len(mf) - 1, "s_nop 0"))
                        fill.append((len(mf) - 1, f"v_cvt_pk_bf16_f32 {PB(e.pb).r(i//2)}, {SB(e.sb).r(i-1)}, {SB(e.sb).r(i)}"))
                odd.append(len(mf) - 1)
                if i == 0 and pv.sumsel:
                    sel = SEL_BOTH if pv.sumsel == "both" else SEL_HI
                    mf.append(f"v_smfmac_f32_16x16x64_bf16 {LS(pv.q//2).r(0,4)}, {sel.r(0,4)}, {PB(pv.pb & ~1).r(0,8)}, v{V_IDX}")
                    fill.append((len(mf) - 1, None)); sm = len(mf) - 1
            self.odd.append(odd); self.sm.append(sm)
        self.g0.append(len(mf))
        S = self.S = Sched(mf)
        for j, x in fill:
            if x is None: S.block(j)
            else: S.g[j]["v"].append(x)
        for cur, odd, sm in zip(groups, self.odd, self.sm):
            r = [read_ins(*x) for x in cur.reads]
            pref = [odd[1], odd[3], odd[5], odd[7]] + ([sm] if sm is not None else []) + [odd[0], odd[4], odd[2], odd[6]] + [odd[0], odd[2], odd[4], odd[6]]
            for x, j in zip(r, sorted(pref[:len(r)])): S.g[j]["m"].append(x)
    def bar(self, gi, wait):
        j = self.g0[gi]
        self.S.g[j]["s"].append(wait); self.S.g[j + 1]["s"].append("s_barrier")
        assert not self.S.g[j]["m"]
    def mem(self, gi, lst, per, off=2):
        j = 0
        for k, x in enumerate(lst):
            sc, ld = x if isinstance(x, tuple) else ([], x)
            g = gi + k // per
            lo = self.g0[g] + off + (k % per) * (self.g0[g + 1] - self.g0[g] - off) // per
            j = self.S.put_m(ld, max(j, lo - len(sc)), sc, maxm=2) + 1
        return j
    def seq(self, gi, lst, off=0, cap=2): return self.S.put_seq(lst, self.g0[gi] + off, cap)
    def finish(self):
        S = self.S; gaps = S.g
        allr = [] if self.start else [(set(regs_of(KF(0, f).r(0, 4))), -8 + 2 * (f - 4)) for f in range(4, 8)]
        for j, g in enumerate(gaps):
            for x in g["m"]:
                if x.startswith("ds_read"): allr.append((set(Ins(x).w), j))
        assert not any(x.startswith("ds_") for x in S.tail)
        done = 0
        def need(k, before):
            nonlocal done
            if k < done: return
            j = before - 1; jj = j
            while jj > allr[k][1] + 5 and jj >= 0 and gaps[jj]["s"] and jj > j - 4: jj -= 1
            if jj < 0 or gaps[jj]["s"]: jj = j
            assert jj >= 0 and allr[k][1] < jj, (k, before, allr[k])
            issued = sum(1 for _, t in allr if t < jj)
            kk = k
            while kk + 1 < issued and allr[kk + 1][1] <= jj - 7: kk += 1
            gaps[jj]["s"].append(f"s_waitcnt lgkmcnt({min(15, issued - 1 - kk)})")
            done = kk + 1
        for i, m in enumerate(S.mf):
            rs = set(Ins(m).r)
            for x in gaps[i]["m"]:
                if x.startswith("buffer_store"): rs |= set(Ins(x).r)
            last = -1
            for k, (d, t) in enumerate(allr):
                if t < i and (d & rs): last = k
            if last >= 0: need(last, i)
        if not self.final:
            need(len(allr) - 5, len(S.mf))
            assert allr[-8][0] == set(regs_of(KF(0, 0).r(0, 4)))
        return S.emit(), (len(S.mf), S.cost())

LOOP = [f"s_sub_u32 s{S_CNT}, s{S_CNT}, 1", f"s_cmp_lg_u32 s{S_CNT}, 0"]
def region_A():
    g = []
    for u in (0, 1):
        g += [G(S0, u, reads=rd("V", u, 0, 4)), G(S1, u, sumsel="both", reads=rd("V", u, 4, 8)),
              G(L0, u, reads=rd("K", u + 1, 0, 4)), G(L1, u, sumsel="both", reads=rd("K", u + 1, 4, 8))]
    R = Region(g)
    R.bar(0, "s_waitcnt vmcnt(8)")
    assert R.mem(0, [pub_mid()] + dma_list(), 2) <= R.g0[5] + 1
    assert R.seq(1, [RB_UPD]) < R.g0[4]
    assert R.seq(5, src_adv(True) + ring_adv(S_RD) + PUB_ADV, 1) < R.g0[6] + 4
    assert R.seq(6, [RA_UPD], 4) < R.g0[8]
    assert R.seq(7, LOOP, 8) < R.g0[8]
    return R.finish()

def region_C():
    g = []
    for u in range(4):
        g += [G(L0, u, reads=rd("V", u)), G(L1, u, sumsel="both", reads=rd("K", u + 1))]
    R = Region(g)
    for t in (0, 4):
        R.bar(t, "s_waitcnt vmcnt(8)")
        assert R.seq(t, [RB_UPD]) < R.g0[t + 1]
        assert R.seq(t + 3, [RA_UPD], 12) < R.g0[t + 4]
        if t == 0: ex = [pub_mid()]
        else:
            R.S.g[R.g0[t] + 2]["s"].append(poll_enable(1)[0]); R.S.g[R.g0[t] + 3]["s"].append(poll_enable(1)[1])
            ex = [mid_poll(S_T1)]
        j = R.mem(t, ex + dma_list(), 3, off=4)
        assert R.seq(t + 1, ring_adv(S_RD) + (PUB_ADV if t == 0 else []), 9) < R.g0[t + 3]
        assert R.S.put_seq(src_adv(False) + (LOOP if t else []), j) < R.g0[t + 4]
    return R.finish()

def region_B(hi, extra, early):
    if not hi:
        g = [G(S1, 0, first=True, reads=[]), G(S0, 0, True, first=True, sumsel="both", reads=[]),
             G(L0, 0, first=True, reads=rd("K", 1, 0, 4)), G(L1, 0, first=True, sumsel="both", reads=rd("K", 1, 4, 8)),
             G(S1, 1, sumsel="hi", reads=rd("V", 1, 0, 6)), G(L0, 1, reads=rd("V", 1, 6, 8) + rd("K", 2, 0, 3)), G(L1, 1, sumsel="both", reads=rd("K", 2, 3, 8)),
             G(S1, 2, sumsel="hi", reads=rd("V", 2, 0, 6)), G(L0, 2, reads=rd("V", 2, 6, 8) + rd("K", 3, 0, 3)), G(L1, 2, sumsel="both", reads=rd("K", 3, 3, 8)),
             G(S1, 3, True, sumsel="hi", reads=rd("V", 3, 0, 6)), G(L0, 3, reads=rd("V", 3, 6, 8) + rd("K", 4, 0, 3)), G(L1, 3, sumsel="both", reads=rd("K", 4, 3, 8))]
        rb2, ra2, masks = 8, 11, [(0, S0, 0), (9, S1, 1)]
    else:
        g = [G(S0, 0, first=True, reads=[]), G(S1, 0, first=True, sumsel="both", reads=[]),
             G(L0, 0, first=True, reads=rd("K", 1, 0, 4)), G(L1, 0, first=True, sumsel="both", reads=rd("K", 1, 4, 8)),
             G(S0, 1, True, reads=rd("V", 1, 0, 4)), G(S1, 1, sumsel="both", reads=rd("V", 1, 4, 8)),
             G(L0, 1, reads=rd("K", 2, 0, 4)), G(L1, 1, sumsel="both", reads=rd("K", 2, 4, 8)),
             G(S1, 2, True, sumsel="hi", reads=rd("V", 2, 0, 6)), G(L0, 2, reads=rd("V", 2, 6, 8) + rd("K", 3, 0, 3)), G(L1, 2, sumsel="both", reads=rd("K", 3, 3, 8)),
             G(L0, 3, reads=rd("V", 3)), G(L1, 3, sumsel="both", reads=rd("K", 4))]
        rb2, ra2, masks = 9, 12, [(3, S0, 0), (7, S1, 1)]
    R = Region(g, start=True)
    for f in range(8): R.S.g[f]["m"].append(read_ins("V", 0, f))
    for gi, sb, par in masks:
        j = R.seq(gi, mask_load(sb, par), cap=3)
        assert j < R.g0[gi + 1]
    assert R.mem(2, early + dma_list("R2"), 3 if not early else 4, off=0) <= R.g0[5] + 1
    assert R.seq(5, src_adv(True) + ring_adv(S_RD), 1) < R.g0[6]
    assert R.seq(6, [RA_UPD]) < R.g0[7]
    R.bar(7, "s_waitvm R1")
    assert R.mem(7, dma_list("R3"), 4, off=3) <= R.g0[10]
    assert R.seq(rb2, [RB_UPD]) < R.g0[ra2 - 1]
    assert R.seq(ra2 - 1, ring_adv(S_RD), 10) < R.g0[ra2] + 2
    assert R.seq(11, src_adv(True), 2) < R.g0[13]
    assert R.seq(ra2, [RA_UPD], 2) < R.g0[13]
    extra(R)
    assert R.seq(12, [f"s_mov_b32 s{S_PUB2}, s{S_PUB}", f"s_mov_b32 s{S_PUB}, {BIG}"]) < R.g0[13]
    return R.finish()

def region_D(hi, OOL, extra):
    N = lambda reads=(): G(None, 0, reads=reads)
    if not hi:
        g = [G(L0, 0, True, sb=S0, reads=rd("V", 0)), G(L1, 0, sumsel="both", reads=rd("K", 1)),
             G(L1, 1, sb=L0, pb=S1, sumsel="hi", reads=rd("K", 2) + rd("V", 1, 0, 4)),
             G(L1, 2, sb=L1, pb=L1, sumsel="hi", reads=rd("V", 1, 4, 8) + rd("K", 3)),
             G(L1, 3, True, sb=S1, pb=S1, sumsel="hi", reads=rd("V", 2)),
             N(rd("V", 3)), N()]
    else:
        g = [G(L0, 0, reads=rd("V", 0)), G(L1, 0, sumsel="both", reads=rd("K", 1)),
             G(L0, 1, True, sb=S0, reads=rd("V", 1)), G(L1, 1, sumsel="both", reads=rd("K", 2)),
             G(L1, 2, True, sb=S1, pb=S1, sumsel="hi", reads=rd("V", 2)),
             N(), N()]
    R = Region(g, final=True)
    assert R.seq(0, [RB_UPD]) < R.g0[1]
    assert R.seq(1, ring_adv(S_RD), 9) < R.g0[2]
    assert R.seq(2, [RA_UPD], cap=3) < R.g0[3]
    if not hi: assert R.seq(4, [RB_UPD]) < R.g0[5]
    R.bar(3, "s_waitvm PRE")
    extra(R)
    return R.finish()

def prologue_scalars():
    return [f"s_lshl_b32 s{S_SOF2}, s{S_J}, 16",
            f"s_add_u32 s{S_T2}, s{S_W8}, 8192",
            f"s_add_u32 s{S_RO}, s{S_SOF2}, s{S_T2}",
            f"s_and_b32 s{S_T2}, s{S_T2}, 0x7fff",
            f"s_add_u32 s{S_JMP}, s{S_SOF2}, s{S_T2}",
            (f"s_cmp_eq_u32 s{S_J}, 0", f"s_cselect_b32 s{S_T3}, 0x10000, 0"),
            f"s_add_u32 s{S_RO+1}, s{S_RO}, 32768",
            f"s_add_u32 s{S_SRC}, s{S_T3}, s{S_W8}",
            f"s_add_u32 s{S_SRC}, s{S_SRC}, 8192",
            (f"s_cmp_eq_u32 s{S_WAVE}, 3", f"s_cselect_b32 s{S_RO+1}, s{S_T3}, s{S_RO+1}"),
            f"s_lshr_b32 s{S_RO+3}, s{S_W8}, 2",
            f"s_add_u32 s{S_RO+2}, s{S_SOF2}, s{S_RO+3}",
            f"s_mov_b32 s{S_RD}, 0",
            f"s_mov_b32 s{S_WR}, {2*32768}",
            f"s_lshl_b32 s{S_PUB}, s{S_J}, 7",
            f"s_add_u32 s{S_PUB}, s{S_PUB}, s{S_W0}",
            f"s_bfe_u32 s{S_T2}, s2, 0x20001", f"s_lshl_b32 s{S_T3}, s{S_J}, 2", f"s_add_u32 s{S_T2}, s{S_T2}, s{S_T3}",
            f"s_lshl_b32 s{S_T2}, s{S_T2}, 7", f"s_add_u32 s{S_T2}, s{S_T2}, s{S_W0}", f"s_add_u32 s{S_Y0}, s{S_T2}, {CTXF_OFF}",
            f"s_add_u32 s{S_PUB}, s{S_PUB}, {FLAG_OFF + 32*128}"]
def k0_dma():
    return [([f"s_add_u32 m0, s{S_RO+3}, {K0_LDS}"] if i == 0 else [],
             tag(f"buffer_load_dwordx4 v{V_L16}, {sr(R_KVL)}, s{S_RO+2} offen offset:{i*1024}{SC1} lds", "R0")) for i in range(2)]
def k0_reads(va): return [f"ds_read_b128 {KF(0, f).r(0,4)}, v{va} offset:{1024*f}" for f in range(8)]
def unit_dma(t):
    out = []
    for i in range(8):
        sc = [f"s_add_u32 m0, s{S_W8}, {t*32768 + i*1024}", f"s_add_u32 s{S_RO+t}, s{S_RO+t}, {i*1024}"] if i % 4 == 0 else []
        out.append((sc, tag(f"buffer_load_dwordx4 v{V_L16}, {sr(R_KVL)}, s{S_RO+t} offen offset:{(i%4)*1024}{SC1} lds", f"R{t}")))
    return out

def init_consts(A, T):
    for k in range(8): A(f"v_accvgpr_write_b32 {LS(0).r(k)}, 0")
    A(f"v_bfe_u32 v{T}, v0, 1, 1")
    A(f"v_lshrrev_b32 v{T+1}, 5, v0")
    A(f"v_mov_b32 v{T+2}, 0x3f803f80")
    A(f"v_cmp_eq_u32 vcc, v{T}, v{T+1}")
    A(f"v_and_b32 v{T+4}, v{T}, v{T+1}")
    A("s_nop 0")
    A(f"v_cndmask_b32 v{T+3}, 0, v{T+2}, vcc")
    A(f"v_cmp_eq_u32 vcc, 1, v{T+4}")
    for k in range(4): A(f"v_accvgpr_write_b32 {SEL_BOTH.r(k)}, v{T+3}")
    A(f"v_cndmask_b32 v{T+3}, 0, v{T+2}, vcc")
    for k in range(4): A(f"v_accvgpr_write_b32 {SEL_HI.r(k)}, v{T+3}")
    A(f"v_lshrrev_b32 v{T}, 4, v0")
    A(f"v_lshlrev_b32 v{T}, 2, v{T}")
    A(f"v_and_b32 v{T+1}, 15, v0")
    A(f"v_sub_u32 v{T}, v{T+1}, v{T}")
    A(f"s_and_b32 s{S_T0}, s{S_WAVE}, 1")
    A(f"s_lshl_b32 s{S_T0}, s{S_T0}, 4")
    A(f"s_sub_u32 s{S_T1}, 16, s{S_T0}")
    for par, sreg in ((0, S_T0), (1, S_T1)):
        A(f"v_add_u32 v{T+1}, s{sreg}, v{T}")
        for k in range(8):
            A(f"v_subrev_u32 v{T+3}, {16*(k//4) + k%4}, v{T+1}")
            A(f"v_ashrrev_i32 v{T+3}, 31, v{T+3}")
            A(f"v_and_b32 v{T+3}, 0xff800000, v{T+3}")
            A(f"v_accvgpr_write_b32 {MASK(par).r(k)}, v{T+3}")

def init_regs():
    return [f"v_mov_b32 v{V_Z}, v{V_LANE0}", f"v_mov_b32 v{V_ONE}, 1",
            f"v_and_b32 v{V_IDX}, 1, v0", f"v_mul_u32_u24 v{V_IDX}, 0xaaaa, v{V_IDX}", f"v_add_u32 v{V_IDX}, 0x4444, v{V_IDX}",
            f"v_mov_b32 v{V_RA}, v{V_L16}", f"v_mov_b32 v{V_RB}, v{V_L16}",
            f"v_sub_u32 v{V_POLL}, 7, v0", f"v_and_b32 v{V_POLL}, {BIG}, v{V_POLL}", f"v_lshl_or_b32 v{V_PADR}, v0, 7, v{V_POLL}",
            f"v_add_u32 v{V_PADR}, {FLAG_OFF + 32*128}, v{V_PADR}"]

def ctx_offsets():
    seq = [f"s_lshl_b32 s{S_T2}, s{S_H}, 14", f"s_add_u32 s{S_T2}, s{S_T2}, {CTX_OFF}"]
    for q in range(4):
        seq += [f"s_lshr_b32 s{S_RO+q}, s{S_ROW+q}, 2", f"s_lshl_b32 s{S_RO+q}, s{S_RO+q}, 19", f"s_and_b32 s{S_T3}, s{S_ROW+q}, 3",
                f"s_lshl_b32 s{S_T3}, s{S_T3}, 10", f"s_add_u32 s{S_RO+q}, s{S_RO+q}, s{S_T3}", f"s_add_u32 s{S_RO+q}, s{S_RO+q}, s{S_T2}"]
    return seq
def norm_store(A, q, r, between=None):
    x = O(q, 0)
    for ds in range(4):
        for k in range(8 * ds, 8 * ds + 8, 2): A(f"v_pk_mul_f32 {x.r(k,2)}, {x.r(k,2)}, v[{r}:{r+1}] op_sel_hi:[1,0]")
        A(f"s_add_u32 s{S_SOFF}, s{S_RO+q}, {4096*ds}")
        for k in range(4): A(f"v_cvt_pk_bf16_f32 {x.r(8*ds+k)}, {x.r(8*ds+2*k)}, {x.r(8*ds+2*k+1)}")
        A(tag(f"buffer_store_dwordx4 {x.r(8*ds,4)}, v{V_L16}, {sr(R_WS)}, s{S_SOFF} offen{SC1}", "CTX"))

def short_epilogue(A):
    A(f"s_lshl_b32 s{S_CNT}, s{S_J}, 1")
    A(f"s_sub_u32 s{S_CNT}, 14, s{S_CNT}")
    A(poll_enable(0)); A(mid_poll(S_T1))
    for k in range(4): A(f"v_accvgpr_read_b32 v{12+k}, {LS(0).r(k)}")
    A(mask_load(S0, 0))
    A("v_add_f32 v12, v12, v13"); A("v_add_f32 v14, v14, v15")
    A("v_rcp_f32 v12, v12"); A("v_rcp_f32 v14, v14")
    A(mask_load(S1, 1))
    norm_store(A, S0, 12); norm_store(A, S1, 14)

def main(A, OOL, paths, extra_B, early_B, extra_D):
    ra, sa = region_A(); rc, sc_ = region_C()
    rb0, sb0 = region_B(False, extra_B, early_B); rb1, sb1 = region_B(True, extra_B, early_B)
    rd0, sd0 = region_D(False, OOL, extra_D); rd1, sd1 = region_D(True, OOL, extra_D)
    print("attn (mfma count, est cycles): A", sa, "B", sb0, sb1, "C", sc_, "D", sd0, sd1)
    A(f"s_lshl_b32 s{S_CNT}, s{S_J}, 1")
    A(f"s_cmp_ge_u32 s{S_WAVE}, 2")
    A("s_waitcnt lgkmcnt(0)")
    n = len(A.lines)
    rb0 = resolve_waits(A.lines + rb0)[n:]; rb1 = resolve_waits(A.lines + rb1)[n:]
    A.lines = resolve_waits(A.lines)
    pre = list(A.lines)
    A("s_cbranch_scc1 L_att_B1")
    A(rb0); A("s_branch L_att_B2")
    A.label("L_att_B1"); A(rb1)
    A.label("L_att_B2")
    stamp(A, grp="a")
    A(f"s_cmp_eq_u32 s{S_CNT}, 0")
    A("s_cbranch_scc1 L_att_S")
    A(".p2align 4")
    A.label("L_att_A"); A(ra); A("s_cbranch_scc1 L_att_A")
    A.label("L_att_S")
    stamp(A, grp="a")
    E = Asm(); short_epilogue(E); E.lines = resolve_waits(E.lines)
    A(E.lines)
    stamp(A, grp="a")
    A(f"s_cmp_eq_u32 s{S_CNT}, 0")
    A("s_cbranch_scc1 L_att_D")
    A(".p2align 4")
    A.label("L_att_C"); A(rc); A("s_cbranch_scc1 L_att_C")
    A.label("L_att_D")
    stamp(A, grp="a")
    D = Asm()
    D("s_waitcnt vmcnt(8) lgkmcnt(0)")
    spin_wait(D, OOL, "L_mid", mid_poll(), [f"v_cmp_eq_u32 vcc, 32, v{V_POLL}", f"s_add_u32 s{S_T0}, vcc_lo, s{S_W0}", f"s_cmp_ge_u32 s{S_T0}, 0xff"])
    D(f"s_cmp_ge_u32 s{S_WAVE}, 2")
    D("s_barrier")
    A(D.lines)
    br = ["s_branch x"]
    for b in (rb0, rb1):
        paths.append(pre + b + br + ra + br + ra + br + E.lines + rc + br + rc + br + D.lines)
        paths.append(pre + b + br + E.lines + rc + br + D.lines)
        paths.append(pre + b + br + ra + br + E.lines + D.lines)
    return rd0, rd1

def epilogue(A, OOL, early):
    for k in range(8): A(f"v_accvgpr_read_b32 v{144+k}, {LS(0).r(k)}")
    for q in range(4): A(f"v_add_f32 v{152+2*q}, v{144+2*q}, v{145+2*q}")
    A(f"v_min3_f32 v12, v152, v154, v156")
    A(f"v_add_f32 v14, v152, v154"); A(f"v_add_f32 v15, v156, v158")
    A(f"v_min_f32 v12, v12, v158"); A(f"v_add_f32 v14, v14, v15")
    A(f"v_mov_b32 v15, 0x4b800000")
    A(f"v_cmp_lt_f32 vcc, 0x33800000, v12")
    A(f"v_cmp_gt_f32 s[{S_T0}:{S_T1}], v15, v14")
    A(f"s_and_b64 vcc, vcc, s[{S_T0}:{S_T1}]")
    A("s_cmp_eq_u64 vcc, exec")
    A("s_cbranch_scc0 L_slow")
    A.label("L_slow_ret")
    slow_path(OOL)
    A("v_rcp_f32 v156, v156"); A("v_rcp_f32 v158, v158")
    A(early)
    norm_store(A, L0, 156); norm_store(A, L1, 158)

def slow_path(B):
    M, L, QI = 160, 164, 168
    S_, X16, X32, T = 144, 172, 173, 244
    B.label("L_slow")
    for r in range(16, 144): B(f"v_mov_b32 v{r}, 0")
    B(f"v_lshrrev_b32 v{T}, 4, v0"); B(f"v_lshlrev_b32 v{T}, 2, v{T}"); B(f"v_and_b32 v{T+1}, 15, v0"); B(f"v_sub_u32 v{T}, v{T+1}, v{T}")
    for q in range(4):
        B(f"v_mov_b32 v{M+q}, 0xff800000"); B(f"v_mov_b32 v{L+q}, 0")
        B(f"s_lshl_b32 s{S_T0}, s{S_ROW+q}, 4"); B(f"v_add_u32 v{QI+q}, s{S_T0}, v{T}")
    B(f"v_xor_b32 v{X16}, 16, v0"); B(f"v_lshlrev_b32 v{X16}, 2, v{X16}")
    B(f"v_xor_b32 v{X32}, 32, v0"); B(f"v_lshlrev_b32 v{X32}, 2, v{X32}")
    B(f"v_mov_b32 v{T+7}, 0xff800000")
    B(f"s_mov_b32 s{S_SRC}, 0")
    B.label("L_slow_loop")
    for f in range(16):
        if f % 4 == 0: B(f"s_add_u32 s{S_T0}, s{S_SRC}, {f*1024}")
        B(f"buffer_load_dwordx4 a[{4*f}:{4*f+3}], v{V_L16}, {sr(R_KVL)}, s{S_T0} offen offset:{(f%4)*1024}{SC1}")
    B("s_waitcnt vmcnt(0)")
    for q in range(4):
        for i in range(8): B(mfma(Reg("v", S_ + 4 * (i // 4)), Reg("a", 4 * i), Q(q, i % 4), 0 if i % 4 == 0 else None))
        B("s_nop 7")
        for k in range(8):
            B(f"v_cmp_le_i32 vcc, {16*(k//4) + k%4}, v{QI+q}")
            B("s_nop 1")
            B(f"v_cndmask_b32 v{S_+k}, v{T+7}, v{S_+k}, vcc")
        B(f"v_subrev_u32 v{QI+q}, 32, v{QI+q}")
        B(f"v_max3_f32 v{T}, v{S_}, v{S_+1}, v{S_+2}"); B(f"v_max3_f32 v{T}, v{T}, v{S_+3}, v{S_+4}")
        B(f"v_max3_f32 v{T}, v{T}, v{S_+5}, v{S_+6}"); B(f"v_max3_f32 v{T}, v{T}, v{S_+7}, v{M+q}")
        for x in (X16, X32):
            B(f"ds_bpermute_b32 v{T+1}, v{x}, v{T}"); B("s_waitcnt lgkmcnt(0)"); B(f"v_max_f32 v{T}, v{T}, v{T+1}")
        B(f"v_sub_f32 v{T+1}, v{M+q}, v{T}"); B(f"v_exp_f32 v{T+1}, v{T+1}"); B(f"v_mov_b32 v{M+q}, v{T}")
        for k in range(8): B(f"v_sub_f32 v{S_+k}, v{S_+k}, v{T}")
        for k in range(8): B(f"v_exp_f32 v{S_+k}, v{S_+k}")
        B(f"v_mul_f32 v{L+q}, v{L+q}, v{T+1}")
        for k in range(8): B(f"v_add_f32 v{L+q}, v{L+q}, v{S_+k}")
        for k in range(4): B(f"v_cvt_pk_bf16_f32 v{240+k}, v{S_+2*k}, v{S_+2*k+1}")
        for k in range(32): B(f"v_mul_f32 {O(q,0).r(k)}, {O(q,0).r(k)}, v{T+1}")
        B("s_nop 1")
        for i in range(8): B(mfma(O(q, i), Reg("a", 32 + 4 * i), Reg("v", 240)))
    B(f"s_add_u32 s{S_SRC}, s{S_SRC}, 16384")
    B(f"s_cmp_lt_u32 s{S_SRC}, s{R_KVL+2}")
    B("s_cbranch_scc1 L_slow_loop")
    for q in range(4):
        for x in (X16, X32):
            B(f"ds_bpermute_b32 v{T+1}, v{x}, v{L+q}"); B("s_waitcnt lgkmcnt(0)"); B(f"v_add_f32 v{L+q}, v{L+q}, v{T+1}")
        B(f"v_mov_b32 v{152+2*q}, v{L+q}")
    B("v_rcp_f32 v152, v152"); B("v_rcp_f32 v154, v154"); B("s_nop 0")
    E = Asm(); norm_store(E, S0, 152); norm_store(E, S1, 154); B(resolve_waits(E.lines))
    B("s_waitcnt vmcnt(0)")
    B("s_branch L_slow_ret")
```

```python
from asmlib import *
import os, math, struct

KV_OFF  = 0
CTX_OFF = 32 << 20
H_OFF   = 48 << 20
WOP_OFF = 56 << 20
W2P_OFF = WOP_OFF + 128 * 40960
G_OFF   = 65 << 20
FLAG_OFF = (65 << 20) + 65536
CTXF_OFF, XF_OFF = FLAG_OFF + 64 * 128, FLAG_OFF + 128 * 128
XCH_OFF = 72 << 20
STAMP_OFF = 70 << 20
WS_SIZE = 128 << 20
BIG = 0x40000000
P_X, P_CKV, P_WQ, P_WUK, P_WUV, P_WO, P_BX, P_W1, P_B1, P_W2, P_B2, P_GATE, P_OUT, P_DBG, P_WS = [4 + 2*i for i in range(15)]
R_CKV, R_WKV, R_X, R_WQ, R_W1, R_WS, R_KVL, R_PKS, R_CNT, R_TMP = [36 + 4*i for i in range(10)]
S_WAVE, S_H, S_J = 76, 77, 78
S_T0, S_T1, S_T2, S_T3 = 80, 81, 82, 83
S_SOFF, S_SOF2, S_SOF3 = 84, 85, 79
S_MA, S_MW, S_MWQ, S_MW1 = 86, 87, 88, 89
S_ROW = 90
S_RO = 94
S_KST, S_VST = 98, 99
S_W0 = 3
S_GOFF = 34
S_X0 = 35
S_Y0, S_Y1 = 100, 101
S_F = 17
HMAP = int(os.environ.get('HMAP', '1'))
FMAP = int(os.environ.get('FMAP', '1'))
S_X1 = 21
SC1 = " sc1"
V_L16 = 1
V_LANE0 = 21

def f2u(x): return hex(struct.unpack("<I", struct.pack("<f", x))[0])
def sr(d): return f"s[{d}:{d+3}]"

def srd(A, d, ptr, size, off=None):
    if off is None:
        A(f"s_mov_b32 s{d}, s{ptr}"); A(f"s_and_b32 s{d+1}, s{ptr+1}, 0xffff")
    else:
        A(f"s_add_u32 s{d}, s{ptr}, {off}"); A(f"s_addc_u32 s{d+1}, s{ptr+1}, 0"); A(f"s_and_b32 s{d+1}, s{d+1}, 0xffff")
    A(f"s_mov_b32 s{d+2}, {size}")
    A(f"s_mov_b32 s{d+3}, 0x20000")

def code_srd(A, d, start_label, end_label):
    A(f"s_getpc_b64 s[{d}:{d+1}]")
    lab = f"L_pc_{len(A.lines)}"
    A.label(lab)
    A(f"s_add_u32 s{d}, s{d}, {start_label}-{lab}")
    A(f"s_addc_u32 s{d+1}, s{d+1}, 0")
    A(f"s_and_b32 s{d+1}, s{d+1}, 0xffff")
    A(f"s_mov_b32 s{d+2}, {end_label}-{start_label}")
    A(f"s_mov_b32 s{d+3}, 0x20000")

STAMPS = int(os.environ.get("STAMPS", "0"))
_st = {"n": 0}
STAMP_REGS = [16, 6, 7, 10, 11, 12, 13, 4, 5, 8, 9, 14, 15, 18, 19, 20]
SG = os.environ.get("SG", "p,o").split(",")
def stamp(A, first=False, grp=None):
    if not STAMPS or (grp and grp not in SG): return
    A("s_memrealtime s[0:1]" if STAMPS == 1 else "s_memtime s[0:1]")
    A("s_waitcnt lgkmcnt(0)")
    A(f"s_mov_b32 s{P_BX if first else [r for r in STAMP_REGS if r != P_BX][_st['n'] - 1]}, s0")
    _st["n"] += 1
def stamp_flush(A):
    if not STAMPS: return
    A("s_waitcnt vmcnt(0)")
    stamp(A)
    A(f"s_lshl_b32 s{S_T0}, s2, 2")
    A(f"s_add_u32 s{S_T0}, s{S_T0}, s{S_WAVE}")
    A(f"s_lshl_b32 s{S_T0}, s{S_T0}, 8")
    A(f"s_add_u32 s{S_T0}, s{S_T0}, {STAMP_OFF}")
    A("v_mov_b32 v2, 0")
    regs = [P_BX] + [r for r in STAMP_REGS if r != P_BX]
    for i in range(_st["n"]):
        A(f"v_mov_b32 v3, s{regs[i]}")
        A(f"buffer_store_dword v3, v2, {sr(R_WS)}, s{S_T0} offen offset:{4*i}")

def spin_wait(A, OOL, name, load, test, limit=1 << 16, sleep=1):
    A(test)
    A(f"s_cbranch_scc0 {name}_spin0")
    A.label(f"{name}_ok")
    OOL.label(f"{name}_spin0")
    OOL(f"s_mov_b32 s{S_T3}, {limit}")
    OOL.label(f"{name}_spin")
    if sleep: OOL(f"s_sleep {sleep}")
    OOL(load)
    OOL("s_waitcnt vmcnt(0)")
    OOL(test)
    OOL(f"s_cbranch_scc1 {name}_ok")
    OOL(f"s_sub_u32 s{S_T3}, s{S_T3}, 1")
    OOL(f"s_cmp_lg_u32 s{S_T3}, 0")
    OOL(f"s_cbranch_scc1 {name}_spin")
    OOL(f"s_branch {name}_ok")

KVPLAIN = int(os.environ.get("KVPLAIN", "0"))

def diag_start(A):
    if os.environ.get("DIAG_T"):
        if os.environ.get("DIAG_FIRST"): A("s_mov_b32 s16, s98"); return
        A("s_memrealtime s[0:1]"); A("s_waitcnt lgkmcnt(0)"); A("s_mov_b32 s16, s0")
def diag_hold(A, where):
    t = os.environ.get("DIAG_T", "")
    if t and t.split(":")[0] == where:
        A.label("L_hold"); A("s_memrealtime s[0:1]"); A("s_waitcnt lgkmcnt(0)"); A("s_sub_u32 s0, s0, s16")
        A(f"s_cmp_lt_u32 s0, {int(float(t.split(':')[1]) * 100)}"); A("s_cbranch_scc1 L_hold")
```

```python
from fcommon import *
from fattn import V_Z, V_ONE
def accB(cb, i): return Reg("v", 144 + 4 * (i * 5 + cb))
def accA(cb, i): return Reg("v", 16 + 4 * (i * 5 + cb))
def fa(b, i): return Reg("a", 128 + 36 * b + 4 * i)
def fw(b, cb): return Reg("a", 128 + 36 * b + 16 + 4 * cb)
S_RT, S_CT, S_RANK, S_TILE = 30, 31, 22, 23
S_OA, S_OW = S_SOF3, S_SOF2
S_POLL = 26
S_ROT = R_CNT
S_LA = [33, S_X1, 28]
S_LW = [29, 32]
S_JW = 27
R_H, R_W2P, R_CTX, R_WOP, R_OUT, R_B2 = R_WKV, R_TMP, R_X, R_WQ, R_W1, R_CKV
V_RAD, V_RWD = 12, 2
NF, NO = 7, 16
N = NF + NO
UNIT = 36864
VT = 136
VG, VB, VF_ = 96, 104, 116
XS, XW = 2560, 8192
A_SLOT = [(0, 0), (1, 0), (1, 16384), (2, 20480)]
W_SLOT = [(0, 16384), (0, 36864), (1, 0), (1, 36864)]
A_BASE = [(0, 65536), (131072, 131072), (65536, 0)]
W_BASE = [(0, 65536), (65536, 0)]

RB = 30 if HMAP else 6
def setup_seqs():
    A = Asm()
    A(f"s_bfe_u32 s{S_RANK}, s2, 0x20001")
    A(f"s_and_b32 s{S_T2}, s2, 1")
    A(f"s_lshl_b32 s{S_T2}, s{S_T2}, 5")
    A(f"s_lshr_b32 s{S_TILE}, s2, 3")
    A(f"s_add_u32 s{S_TILE}, s{S_TILE}, s{S_T2}")
    A(f"s_lshr_b32 s{S_RT}, s{S_TILE}, 2")
    A(f"s_lshl_b32 s{S_RT}, s{S_RT}, 1")
    A(f"s_and_b32 s{S_T3}, s{S_WAVE}, 1")
    A(f"s_add_u32 s{S_RT}, s{S_RT}, s{S_T3}")
    A(f"s_and_b32 s{S_CT}, s{S_TILE}, 3")
    A(f"s_lshl_b32 s{S_CT}, s{S_CT}, 1")
    A(f"s_lshr_b32 s{S_T3}, s{S_WAVE}, 1")
    A(f"s_add_u32 s{S_CT}, s{S_CT}, s{S_T3}")
    A2 = Asm()
    A2(f"s_mul_i32 s{S_T2}, s{S_RT}, {54*4096}")
    A2(f"s_add_u32 s{S_T2}, s{S_T2}, {H_OFF}")
    srd(A2, R_H, P_WS, 54 * 4096, f"s{S_T2}")
    A2(f"s_mul_i32 s{S_T2}, s{S_CT}, 5120")
    A2(f"s_add_u32 s{S_T2}, s{S_T2}, {W2P_OFF}")
    srd(A2, R_W2P, P_WS, 53 * 40960 + 5120, f"s{S_T2}")
    B = Asm()
    B(f"s_lshl_b32 s{S_T2}, s{S_RT}, 19")
    B(f"s_mul_i32 s{S_T3}, s{S_RANK}, {RB*4096}")
    B(f"s_add_u32 s{S_T2}, s{S_T2}, s{S_T3}")
    B(f"s_add_u32 s{S_T2}, s{S_T2}, {CTX_OFF}")
    srd(B, R_CTX, P_WS, (128 - 3*RB) * 4096, f"s{S_T2}")
    B(f"s_mul_i32 s{S_T2}, s{S_CT}, 5120")
    B(f"s_mul_i32 s{S_T3}, s{S_RANK}, {RB*40960}")
    B(f"s_add_u32 s{S_T2}, s{S_T2}, s{S_T3}")
    B(f"s_add_u32 s{S_T2}, s{S_T2}, {WOP_OFF}")
    srd(B, R_WOP, P_WS, (127 - 3*RB) * 40960 + 5120, f"s{S_T2}")
    srd(B, R_OUT, P_OUT, 2048 * 1280)
    return group_scc(A.lines), group_scc(A2.lines), group_scc(B.lines)

def pre():
    seq = []
    seq += [f"s_lshl_b32 s{S_JW}, s{S_RANK}, 1", f"s_lshr_b32 s{S_T2}, s{S_WAVE}, 1", f"s_add_u32 s{S_T2}, s{S_JW}, s{S_T2}", f"s_lshl_b32 s{S_T2}, s{S_T2}, 2"]
    for q in range(4):
        seq += [f"s_add_u32 s{S_T3}, s{S_RANK}, {q}", f"s_and_b32 s{S_T3}, s{S_T3}, 3", f"s_add_u32 s{S_T3}, s{S_T3}, s{S_T2}", f"s_lshl_b32 s{S_ROT+q}, s{S_T3}, 10"]
    seq += [f"s_and_b32 s{S_T3}, s{S_WAVE}, 1", f"s_add_u32 s{S_JW}, s{S_JW}, s{S_T3}", f"s_mul_i32 s{S_JW}, s{S_JW}, 40960"]
    seq += [f"s_lshl_b32 s{S_T3}, s{S_T3}, 1", f"s_lshr_b32 s{S_T2}, s{S_WAVE}, 1", f"s_add_u32 s{S_T3}, s{S_T3}, s{S_T2}", f"s_mul_i32 s{S_T3}, s{S_T3}, 5120",
            f"s_and_b32 s{S_T2}, s{S_J}, 1"]
    for r, (e, o) in zip(S_LW, W_BASE):
        seq += [f"s_mul_i32 s{r}, s{S_T2}, {o - e}", f"s_add_u32 s{r}, s{r}, {e}", f"s_add_u32 s{r}, s{r}, s{S_T3}"]
    seq += [f"s_lshl_b32 s{S_T3}, s{S_WAVE}, 12"]
    for r, (e, o) in zip(S_LA, A_BASE):
        seq += [f"s_mul_i32 s{r}, s{S_T2}, {o - e}", f"s_add_u32 s{r}, s{r}, {e}", f"s_add_u32 s{r}, s{r}, s{S_T3}"]
    return seq
def slab0(n):
    if n < NF: return 8 * n
    return 2 * (n - NF) if HMAP else 32 * ((n - NF) >> 2) + 2 * ((n - NF) & 3)
def dma_w(n):
    ffn = n < NF
    r = R_W2P if ffn else R_WOP
    out = []
    for c in range(5):
        sc = [f"s_add_u32 m0, s{S_LW[W_SLOT[n%4][0]]}, {W_SLOT[n%4][1] + c*1024}", f"s_add_u32 s{S_OW}, s{S_JW}, {slab0(n)*40960 + c*1024}"] if c % 4 == 0 else []
        out.append((sc, tag(f"buffer_load_dwordx4 v{V_L16}, {sr(r)}, s{S_OW} offen offset:{(c%4)*1024}{SC1} lds", f"U{n}")))
    return out
def dma_a(n):
    ffn = n < NF
    r = R_H if ffn else R_CTX
    return [([f"s_add_u32 m0, s{S_LA[A_SLOT[n%4][0]]}, {A_SLOT[n%4][1] + q*1024}", f"s_add_u32 s{S_OA}, s{S_ROT+q}, {slab0(n)*4096}"],
             tag(f"buffer_load_dwordx4 v{V_L16}, {sr(r)}, s{S_OA} offen{SC1} lds", f"U{n}")) for q in range(4)]
def reads(sl):
    n, s_ = sl // 2, sl % 2
    b = sl % 2
    (ab, ao), (wb, wo) = A_SLOT[n % 4], W_SLOT[n % 4]
    r = [f"ds_read_b128 {fa(b, i).r(0,4)}, v{V_RAD+ab} offset:{ao + s_*8192 + i*1024}" for i in range(4)]
    w = [f"ds_read_b128 {fw(b, c).r(0,4)}, v{V_RWD+wb} offset:{wo + s_*10240 + c*1024}" for c in range(5)]
    return [w[0]] + r + w[1:]
DPRE = int(os.environ.get("DPRE", "2"))
def extra_D(R):
    lst = []
    for n in range(DPRE): lst += dma_w(n) + dma_a(n)
    if lst: R.mem(0, lst, 3 if DPRE == 2 else 2, off=2)
    R.S.tail += (["s_waitvm U0"] if DPRE else []) + ["s_barrier"]
NEARLY = int(os.environ.get("NEARLY", "1"))
def early():
    out = addr_init() + (reads(0) if DPRE else [])
    for n in range(DPRE, DPRE + NEARLY):
        for sc, ld in dma_w(n) + dma_a(n): out += sc + [ld]
    return out
def addr_init():
    seq = [f"s_lshr_b32 s{S_T0}, s{S_WAVE}, 1", f"s_lshl_b32 s{S_T0}, s{S_T0}, 13", f"s_and_b32 s{S_T1}, s{S_WAVE}, 1", f"s_mul_i32 s{S_T1}, s{S_T1}, 10240",
           f"v_subrev_u32 v5, s{S_T0}, v{V_L16}", f"v_subrev_u32 v6, s{S_T1}, v{V_L16}"]
    seq += [f"v_add_u32 v{V_RAD+k}, s{S_LA[k]}, v5" for k in range(3)] + [f"v_add_u32 v{V_RWD+k}, s{S_LW[k]}, v6" for k in range(2)]
    return seq

PUB = int(os.environ.get("PUB", "2"))
CHK = int(os.environ.get("CHK", "5"))
def body(A, OOL):
    vpoll = [f"buffer_load_dword v4, v{V_Z}, {sr(R_WS)}, s{S_Y1} offen{SC1}"]
    pend = []
    for n in range(DPRE + NEARLY, 4): pend += dma_w(n) + dma_a(n)
    if not DPRE: A("s_waitvm U0"); A("s_barrier"); A(reads(0))
    held = []
    XR = 224
    xloads = []
    for k, so in enumerate((S_ROT, S_T0, S_T1)):
        d = Reg("v", XR + 10 * k)
        xloads += [f"buffer_load_dwordx4 {d.r(4*c2,4)}, v5, {sr(R_WS)}, s{so} offen offset:{c2*1024}{SC1}" for c2 in range(2)]
        xloads += [f"buffer_load_dwordx2 {d.r(8,2)}, v6, {sr(R_WS)}, s{so} offen offset:2048{SC1}"]
    for sl in range(2 * N):
        n, s_ = sl // 2, sl % 2
        b = sl % 2
        acc = accB if n < NF else accA
        first = sl in (0, 2 * NF)
        order = [(i, cb) for i in (1, 2, 3, 0) for cb in range(5)] if sl == 2 * N - 1 else [(i, cb) for cb in range(5) for i in range(4)]
        S = Sched([mfma(acc(cb, i), fw(b, cb), fa(b, i), 0 if first else None) for i, cb in order])
        lo = 0
        if s_ == 1 and n + 1 < N:
            assert not any(x[1].endswith(f"@U{n+1}") for x in pend + held)
            tags = f"U{n+1}" + (",CTX" if n == PUB else "") + (",CP" if n == CHK else "")
            if n == CHK:
                A(f"s_waitvm {tags}")
                stamp(A, grp="o")
                spin_wait(A, OOL, "L_ctx", vpoll, [f"v_readfirstlane_b32 s{S_POLL}, v4", f"s_add_u32 s{S_POLL}, s{S_POLL}, s{S_W0}", f"s_cmp_ge_u32 s{S_POLL}, 8"])
                stamp(A, grp="o")
                pend = held + pend; held = []
            else: S.put_s(f"s_waitvm {tags}", 0)
            S.put_s("s_barrier", 1)
            lo = 2
            if n == PUB: S.put_m(f"buffer_atomic_add v{V_ONE}, v{V_Z}, {sr(R_WS)}, s{S_Y0} offen{SC1}", 1)
            if n + 4 < N:
                pend += dma_w(n + 4)
                if n + 4 >= NF and n < CHK: held += dma_a(n + 4)
                else: pend += dma_a(n + 4)
        if s_ == 0 and n == CHK - 1: S.put_m(tag(vpoll[0], "CP"), 0)
        cnt = min(len(pend), 5 if len(pend) <= 10 and s_ == 1 else (4 if len(pend) <= 5 else 6))
        j = lo
        for k in range(cnt):
            sc, ld = pend.pop(0)
            j = S.put_m(ld, max(j, lo + k * (20 - lo) // cnt - 1), sc) + 1
        if sl + 1 < 2 * N:
            j = lo
            for k, x in enumerate(reads(sl + 1)): j = S.put_m(x, j)
        if sl == 0:
            S.put_seq([f"s_lshr_b32 s{S_T0}, s{S_RT}, 1", f"s_sub_u32 s{S_T1}, 15, s{S_T0}", f"s_min_u32 s{S_T0}, s{S_T0}, s{S_T1}",
                       f"s_lshl_b32 s{S_T0}, s{S_T0}, 2", f"s_add_u32 s{S_T0}, s{S_T0}, s{S_RANK}",
                       f"s_lshl_b32 s{S_T0}, s{S_T0}, 7", f"s_add_u32 s{S_T0}, s{S_T0}, s{S_W0}", f"s_add_u32 s{S_Y1}, s{S_T0}, {CTXF_OFF}"], 0)
        if sl == 15:
            B = Asm(); B(f"s_mul_i32 s{S_T2}, s{S_CT}, 160"); srd(B, R_B2, P_B2, 160, f"s{S_T2}")
            S.put_seq(group_scc(B.lines), 2)
        if sl == 16:
            S.put_seq(["v_and_b32 v8, 15, v0", "v_lshlrev_b32 v5, 2, v8", "v_lshrrev_b32 v6, 4, v0", "v_lshlrev_b32 v6, 3, v6",
                       f"s_mul_i32 s{S_T0}, s{S_WAVE}, {16*176}", "v_mul_u32_u24 v8, 176, v8", f"v_add3_u32 v8, v8, v6, s{S_T0}",
                       f"s_lshl_b32 s{S_T0}, s{S_RT}, 8", f"s_add_u32 s{S_T0}, s{S_T0}, {G_OFF}"], 0)
        if sl in (17, 18, 19, 20):
            i = sl - 17
            S.put_seq([f"s_bfe_u32 s{S_T1}, s{S_ROT+i}, 0x2000a", f"s_lshl_b32 s{S_T1}, s{S_T1}, 6", f"s_add_u32 s{S_T1}, s{S_T1}, s{S_T0}",
                       tag(f"buffer_load_dword v{VG+2*i}, v5, {sr(R_WS)}, s{S_T1} offen{SC1}", "GB")], 2)
        if sl == 21: S.put_seq([tag(f"buffer_load_dwordx2 v[{VB+2*cb}:{VB+1+2*cb}], v6, {sr(R_B2)}, 0 offen offset:{32*cb}", "GB") for cb in range(5)], 2)
        if sl == 24:
            S.put_seq([f"s_lshl_b32 s{S_T0}, s{S_TILE}, 4", f"s_add_u32 s{S_T0}, s{S_T0}, s{S_WAVE}", f"s_mul_i32 s{S_T0}, s{S_T0}, {XW}",
                       f"s_add_u32 s{S_T0}, s{S_T0}, {XCH_OFF}", f"v_add_u32 v5, s{S_T0}, v{V_L16}", "v_lshlrev_b32 v6, 3, v0", f"v_add_u32 v6, s{S_T0}, v6"], 0)
        if sl == 25:
            S.put_seq([f"s_lshl_b32 s{S_T0}, s{S_TILE}, 7", f"s_lshl_b32 s{S_T1}, s{S_WAVE}, 2", f"s_add_u32 s{S_T0}, s{S_T0}, s{S_T1}", f"s_add_u32 s{S_Y1}, s{S_T0}, {XF_OFF}"], 2)
        if sl in (27, 28, 29):
            k = sl - 27
            S.put_seq([f"v_add_u32 v7, {64*k}, v0", "v_mul_u32_u24 v15, 6554, v7", "v_lshrrev_b32 v15, 16, v15", "v_lshlrev_b32 v7, 4, v7",
                       f"s_mul_i32 s{S_T0}, s{S_WAVE}, {16*176}", f"v_lshl_add_u32 v{VT+k}, v15, 4, v7", f"v_add_u32 v{VT+k}, s{S_T0}, v{VT+k}",
                       "v_mul_u32_u24 v15, 1120, v15", f"v_add_u32 v{VT+3+k}, v15, v7"]
                      + ([f"v_sub_u32 v15, 31, v0", f"v_and_b32 v15, {BIG}, v15", f"v_or_b32 v{VT+5}, v{VT+5}, v15"] if k == 2 else []), 2)
        if sl == 26:
            S.put_seq([f"s_lshl_b32 s{S_T0}, s{S_RT}, 2", f"s_add_u32 s{S_T0}, s{S_T0}, s{S_RANK}", f"s_mul_i32 s{S_T0}, s{S_T0}, {16*1280}",
                       f"s_mul_i32 s{S_T1}, s{S_CT}, 160", f"s_add_u32 s{S_RO}, s{S_T0}, s{S_T1}"], 0)
        if sl == 30:
            seq = ["s_waitvm GB"] + [f"v_sub_f32 v{VG+2*i+1}, 1.0, v{VG+2*i}" for i in range(4)]
            for cb in range(5):
                seq += [f"v_lshlrev_b32 v{VF_+4*cb}, 16, v{VB+2*cb}", f"v_and_b32 v{VF_+1+4*cb}, 0xffff0000, v{VB+2*cb}",
                        f"v_lshlrev_b32 v{VF_+2+4*cb}, 16, v{VB+1+2*cb}", f"v_and_b32 v{VF_+3+4*cb}, 0xffff0000, v{VB+1+2*cb}"]
            S.put_seq(seq, 0)
        if sl == 31: S.put_seq([f"v_add_f32 {accB(k//4, 0).r(k%4)}, {accB(k//4, 0).r(k%4)}, v{VF_+k}" for k in range(20)], 2)
        if 32 <= sl < 36:
            i = sl - 32
            S.put_seq([f"v_mul_f32 {accB(k//4, i).r(k%4)}, {accB(k//4, i).r(k%4)}, v{VG+2*i+1}" for k in range(20)], 2)
        if sl == 40:
            seq = []
            for i in range(4):
                seq += [f"s_bfe_u32 s{S_ROT+i}, s{S_ROT+i}, 0x2000a", f"s_mul_i32 s{S_ROT+i}, s{S_ROT+i}, {4*XW}"]
                if i > 1: seq.append(f"s_add_u32 s{S_ROT+i}, s{S_ROT+i}, {(i-1)*XS}")
            assert not pend
            S.put_seq(seq + [f"s_add_u32 s{S_T0}, s{S_ROT}, {XS}", f"s_add_u32 s{S_T1}, s{S_ROT}, {2*XS}"], 0)
        if sl == 2 * N - 1:
            S.put_s("s_barrier", 0)
        A("s_waitcnt lgkmcnt(0)")
        A(S.emit())
        if S.cost() > 320: print(f"  slab {sl}: est {S.cost()}, tail {len(S.tail)}")
    assert not pend and not held
    stamp(A, grp="o")
    def mix(i):
        return [[f"v_pk_fma_f32 {accA(cb,i).r(k,2)}, {accA(cb,i).r(k,2)}, v[{VG+2*i}:{VG+2*i+1}], {accB(cb,i).r(k,2)} op_sel_hi:[1,0,1]" for k in (0, 2)] for cb in range(5)]
    for i in (1, 2, 3):
        x = accA(0, i)
        for cb in range(5):
            A(mix(i)[cb])
            A(f"v_cvt_pk_bf16_f32 {x.r(2*cb)}, {x.r(4*cb)}, {x.r(4*cb+1)}"); A(f"v_cvt_pk_bf16_f32 {x.r(2*cb+1)}, {x.r(4*cb+2)}, {x.r(4*cb+3)}")
            if cb in (1, 3): A(f"buffer_store_dwordx4 {x.r(4*(cb//2), 4)}, v5, {sr(R_WS)}, s{S_ROT+i} offen offset:{(cb//2)*1024}{SC1}")
            elif cb == 4: A(f"buffer_store_dwordx2 {x.r(8, 2)}, v6, {sr(R_WS)}, s{S_ROT+i} offen offset:2048{SC1}")
    A(mix(0))
    A("v_mov_b32 v4, 1")
    A("s_waitcnt vmcnt(0)")
    A(f"buffer_atomic_add v4, v{V_Z}, {sr(R_WS)}, s{S_Y1} offen sc0{SC1}")
    A("s_waitcnt vmcnt(0)")
    A("v_add_u32 v4, 1, v4")
    stamp(A, grp="o")
    xpoll = f"buffer_load_dword v4, v{V_Z}, {sr(R_WS)}, s{S_Y1} offen{SC1}"
    spin_wait(A, OOL, "L_x", xpoll, ["s_nop 0", f"v_readfirstlane_b32 s{S_POLL}, v4", f"s_cmp_ge_u32 s{S_POLL}, 4"], sleep=XSLEEP)
    stamp(A, grp="o")
    for c2 in range(3):
        for k in range(3): A(tag(xloads[3*k + c2], f"X{2*c2}"))
    for cb in range(5):
        d = accA(cb, 0)
        if cb % 2 == 0: A(f"s_waitvm X{cb}")
        for k in range(3):
            for e in range(2):
                src = XR + 10 * k + 2 * cb + e
                A(f"v_lshlrev_b32 {accB(cb,k).r(2*e)}, 16, v{src}"); A(f"v_and_b32 {accB(cb,k).r(2*e+1)}, 0xffff0000, v{src}")
        for k in (0, 2):
            A(f"v_pk_add_f32 {d.r(k,2)}, {d.r(k,2)}, {accB(cb,0).r(k,2)}")
            A(f"v_pk_add_f32 {accB(cb,1).r(k,2)}, {accB(cb,1).r(k,2)}, {accB(cb,2).r(k,2)}")
        for k in (0, 2): A(f"v_pk_add_f32 {d.r(k,2)}, {d.r(k,2)}, {accB(cb,1).r(k,2)}")
        A(f"v_cvt_pk_bf16_f32 {d.r(0)}, {d.r(0)}, {d.r(1)}")
        A(f"v_cvt_pk_bf16_f32 {d.r(1)}, {d.r(2)}, {d.r(3)}")
        A(f"ds_write_b64 v8, {d.r(0,2)} offset:{32*cb}")
    for k in range(3): A(f"ds_read_b128 v[{40+4*k}:{43+4*k}], v{VT+k}")
    for k in range(3):
        A(f"s_waitcnt lgkmcnt({2-k})")
        A(f"buffer_store_dwordx4 v[{40+4*k}:{43+4*k}], v{VT+3+k}, {sr(R_OUT)}, s{S_RO} offen{OST}")
    stamp(A, grp="o")
XSLEEP = int(os.environ.get("XSLEEP", "0"))
OST = os.environ.get("OST", "").replace("_", " ")
```

```python
from fcommon import *
import fattn, fout

ACT_SLOT = 32768
W_BASE, W_SLOT = 98304, 16384
V_VOFFA, V_VOFFW, V_VOFF1 = 2, 3, 4
V_AADDR = 5
V_WADDR = 9
V_W1 = 17
T = 22
NA, NBS = 16, 20
NST = NA + NBS
PACK_LDS = 131072

def pair_of(tb, cb):
    uu = tb // 2
    if cb < 4: return 8 * uu + 2 * (tb % 2) + cb // 2, cb % 2
    return 8 * uu + 4 + (cb - 4), tb % 2
def cell(pair, m):
    if pair < 4: return Reg("a", 128 + 8 * pair + 4 * m)
    return Reg("v", (144 if m == 0 else 32) + 4 * (pair - 4))
def acc_a(tb, cb): return cell(*pair_of(tb, cb))
def fa_act(set_, tb): return Reg("a", 64 * set_ + 4 * tb)
def fa_w(set_, cb): return Reg("a", 64 * set_ + 32 + 4 * cb)
def accq_final(qb, db): return Reg("v", 32 + 32 * qb + 4 * db)
def acch_final(qb, fb): return Reg("v", 176 + 16 * qb + 4 * fb)
def start_a(kind, qb, i):
    if kind == "h": return Reg("a", 144 + 16 * qb + 4 * i)
    if qb == 3 and i >= 4: return Reg("a", 128 + 4 * (i - 4))
    return None
BIAS = Reg("a", 208)
def fb_act(set_, qb): return Reg("a", 64 * set_ + 4 * qb)
def fb_w(set_, cb): return Reg("a", 64 * set_ + 16 + 4 * cb)

KROT = int(os.environ.get('KROT', '0'))
S_KA, S_KW = S_SOF2, S_Y1
def NT(bit): return ' nt' if int(os.environ.get('NT', '3')) & bit else ''
def act_dma(t, half):
    out = []
    for q in range(4):
        i = 4 * half + q
        sc = []
        if q == 0: sc.append(f"s_add_u32 m0, s{S_MA}, {(t%3)*ACT_SLOT + half*4096}")
        if t < 8:
            if KROT:
                if i == 0: sc = [f"s_add_u32 s{S_KA}, s{S_KA}, 128", f"s_and_b32 s{S_KA}, s{S_KA}, 1023"] + sc
                sc.append(f"s_add_u32 s{S_SOFF}, s{S_KA}, {i*8192 - q*1024}")
            else: sc.append(f"s_mov_b32 s{S_SOFF}, {t*128 + i*8192 - q*1024}")
            r = R_CKV
        else:
            off = (t - 8) * 128 + (i & 1) * 8 * 1280 - q * 1024
            sc.append(f"s_add_u32 s{S_SOFF}, s{S_RO + (i>>1)}, {off & 0xffffffff}"); r = R_X
        out.append((sc, tag(f"buffer_load_dwordx4 v{V_VOFFA}, {sr(r)}, s{S_SOFF} offen offset:{q*1024} lds", f"A{t}")))
    return out
def w_dma(st):
    out = []
    if st < NA:
        for q, row in enumerate((0, 4, 16, 20)):
            sc = []
            if q % 2 == 0: sc.append(f"s_add_u32 m0, s{S_MW}, {(st%4)*W_SLOT + row*256}")
            if KROT:
                if q == 0: sc = [f"s_add_u32 s{S_KW}, s{S_KW}, {32*8192}", f"s_and_b32 s{S_KW}, s{S_KW}, {512*8192 - 1}"] + sc
                sc.append(f"s_add_u32 s{S_SOFF}, s{S_KW}, {row*8192 - (q%2)*1024}")
            else: sc.append(f"s_mov_b32 s{S_SOFF}, {(st*32 + row)*8192 - (q%2)*1024}")
            out.append((sc, tag(f"buffer_load_dwordx4 v{V_VOFFW}, {sr(R_WKV)}, s{S_SOFF} offen offset:{(q%2)*1024}{NT(1)} lds", f"W{st}")))
    else:
        k = st - NA
        for q in range(2):
            sc = []
            if q == 0: sc.append(f"s_add_u32 m0, s{S_MWQ}, {(st%4)*W_SLOT}")
            sc.append(f"s_mov_b32 s{S_SOFF}, {(k*32 + 4*q)*8192 - q*1024}")
            out.append((sc, tag(f"buffer_load_dwordx4 v{V_VOFFW}, {sr(R_WQ)}, s{S_SOFF} offen offset:{q*1024} lds", f"W{st}")))
        out.append(([f"s_add_u32 m0, s{S_MW1}, {(st%4)*W_SLOT}", f"s_mov_b32 s{S_SOFF}, {k*32*3456}"],
                    tag(f"buffer_load_dwordx4 v{V_VOFF1}, {sr(R_W1)}, s{S_SOFF} offen lds", f"W{st}")))
    return out
def emit_dma(A, lst):
    for sc, ld in lst: A(sc); A(ld)

def act_read(t, ks, blk, dst):
    slot = t % 3
    if slot < 2: return f"ds_read_b128 {dst.r(0,4)}, v{V_AADDR+ks} offset:{slot*ACT_SLOT + blk*2048}"
    return f"ds_read_b128 {dst.r(0,4)}, v{V_AADDR+2+ks} offset:{blk*2048}"
def reads(st):
    set_ = st % 2; t, ks = st // 2, st % 2
    r = []
    if st < NA:
        for i in range(8):
            r.append(act_read(t, ks, i, fa_act(set_, i)))
            for sec in range(2):
                r.append(f"ds_read_b64_tr_b16 {fa_w(set_, i).r(2*sec, 2)}, v{V_WADDR + i%4} offset:{(st%4)*W_SLOT + (i//4)*8192 + sec*1024}")
    else:
        for cb in range(12):
            if cb % 3 == 0: r.append(act_read(t, ks, cb // 3, fb_act(set_, cb // 3)))
            for sec in range(2):
                if cb < 8: r.append(f"ds_read_b64_tr_b16 {fb_w(set_, cb).r(2*sec, 2)}, v{V_WADDR+cb} offset:{(st%4)*W_SLOT + sec*1024}")
                else:      r.append(f"ds_read_b64_tr_b16 {fb_w(set_, cb).r(2*sec, 2)}, v{V_W1+cb-8} offset:{(st%4)*W_SLOT + sec*512}")
    return r

def mfmas_a(st):
    set_ = st % 2
    order = [(tb, cb) for cb in range(4) for tb in range(8)] + [(tb, cb) for tb in range(8) for cb in range(4, 8)]
    if st == NA - 1: order.sort(key=lambda x: pair_of(*x))
    out = []
    for tb, cb in order:
        c = 0 if st == 0 else None
        if cb < 4: out.append(mfma(acc_a(tb, cb), fa_w(set_, cb), fa_act(set_, tb), c))
        else:      out.append(mfma(acc_a(tb, cb), fa_act(set_, tb), fa_w(set_, cb), c))
    return out

MIG = {"h": [31, 32, 32, 33], "q": 31}
def home(kind, qb, i, st):
    fin = acch_final(qb, i) if kind == "h" else accq_final(qb, i)
    sa = start_a(kind, qb, i)
    if sa is None: return fin
    m = MIG["h"][qb] if kind == "h" else MIG["q"]
    return sa if st <= m else fin
def order_b(st):
    o = [("h", qb, fb) for fb in range(4) for qb in range(4)]
    if st == NA: o += [("q", 3, db) for db in range(4, 8)] + [("q", qb, db) for qb in range(4) for db in range(8) if not (qb == 3 and db >= 4)]
    else: o += [("q", qb, db) for db in (4, 5, 6, 7, 0, 1, 2, 3) for qb in range(4)]
    return o
def mfmas_b(st):
    set_ = st % 2
    out = []
    for kind, qb, i in order_b(st):
        d = home(kind, qb, i, st)
        if kind == "q": out.append(mfma(d, fb_w(set_, i), fb_act(set_, qb), 0 if st == NA else None))
        else:           out.append(mfma(d, fb_w(set_, 8 + i), fb_act(set_, qb), BIAS + 4 * i if st == NA else None))
    return out

def kv_store(pair, data):
    uu, r = pair // 8, pair % 8
    if r < 4: base, off = S_KST, uu * 16384 + (r // 2) * 4096 + (r % 2) * 1024
    else: base, off = S_VST, uu * 16384 + (r - 4) * 1024
    if os.environ.get("KVX") == "oob": off += BIG
    return ([f"s_add_u32 s{S_SOF2}, s{base}, {off}"], tag(f"buffer_store_dwordx4 {data.r(0,4)}, v{V_L16}, {sr(R_WS)}, s{S_SOF2} offen{SC1}", "KV"))
def pack4(d, ra, rb):
    return [f"v_cvt_pk_bf16_f32 {d.r(0)}, {ra.r(0)}, {ra.r(1)}", f"v_cvt_pk_bf16_f32 {d.r(1)}, {ra.r(2)}, {ra.r(3)}",
            f"v_cvt_pk_bf16_f32 {d.r(2)}, {rb.r(0)}, {rb.r(1)}", f"v_cvt_pk_bf16_f32 {d.r(3)}, {rb.r(2)}, {rb.r(3)}"]

def entry(A):
    if os.environ.get("DIAG_FIRST"): A("s_memrealtime s[98:99]")
    A("s_cmp_ge_u32 s2, 256")
    A("s_cbranch_scc1 L_exit")
    if os.environ.get("DIAG_DELAY"):
        A("s_bfe_u32 s3, s2, 0x20001"); A(f"s_cmp_lg_u32 s3, {os.environ['DIAG_DELAY']}"); A("s_cbranch_scc1 L_nodelay"); A("s_sleep 112"); A.label("L_nodelay")
    if os.environ.get("BXOR"): A(f"s_xor_b32 s2, s2, {os.environ['BXOR']}")
    A("s_load_dwordx16 s[4:19], s[0:1], 0")
    A("s_load_dwordx8 s[20:27], s[0:1], 64")
    A("s_load_dwordx4 s[28:31], s[0:1], 96")
    A("s_load_dwordx2 s[32:33], s[0:1], 112")
    A(f"v_readfirstlane_b32 s{S_WAVE}, v0")
    A("v_and_b32 v0, 63, v0")
    if HMAP:
        A(f"s_and_b32 s{S_H}, s2, 7")
        A(f"s_lshl_b32 s{S_H}, s{S_H}, 2")
        A(f"s_bfe_u32 s{S_J}, s2, 0x20003")
        A(f"s_add_u32 s{S_H}, s{S_H}, s{S_J}")
    else: A(f"s_and_b32 s{S_H}, s2, 31")
    A(f"s_lshr_b32 s{S_J}, s2, 5")
    A(f"s_lshr_b32 s{S_WAVE}, s{S_WAVE}, 6")
    A(f"v_lshrrev_b32 v{T}, 3, v0")
    A(f"v_and_b32 v{T+1}, 6, v{T}")
    A(f"v_and_b32 v{T+2}, 7, v0")
    A(f"v_xor_b32 v{T+1}, v{T+1}, v{T+2}")
    A(f"s_lshl_b32 s{S_T0}, s{S_WAVE}, 6")
    A(f"v_add_u32 v{T}, s{S_T0}, v{T}")
    A(f"v_lshlrev_b32 v{T}, 10, v{T}")
    A(f"v_lshl_add_u32 v{V_VOFFA}, v{T+1}, 4, v{T}")
    A(f"s_lshl_b32 s{S_MA}, s{S_WAVE}, 13")
    A(f"s_and_b32 s{S_T0}, s{S_WAVE}, 1")
    A(f"s_lshl_b32 s{S_T1}, s{S_T0}, 3")
    A(f"v_lshrrev_b32 v{T}, 4, v0")
    A(f"v_lshl_or_b32 v{T+1}, v{T}, 1, s{S_T1}")
    A(f"v_and_b32 v{T+2}, 15, v0")
    A(f"v_xor_b32 v{T+1}, v{T+1}, v{T+2}")
    A(f"v_add_u32 v{T}, s{S_T1}, v{T}")
    A(f"v_lshlrev_b32 v{T}, 13, v{T}")
    A(f"v_lshl_add_u32 v{V_VOFFW}, v{T+1}, 4, v{T}")
    A(f"s_lshr_b32 s{S_T1}, s{S_WAVE}, 1")
    A(f"s_lshl_b32 s{S_T1}, s{S_T1}, 13")
    A(f"s_lshl_b32 s{S_T0}, s{S_T0}, 11")
    A(f"s_add_u32 s{S_MW}, s{S_T0}, s{S_T1}")
    A(f"s_add_u32 s{S_MW}, s{S_MW}, {W_BASE}")
    if KROT:
        A(f"s_mul_i32 s{S_KA}, s2, {KROT}")
        A(f"s_and_b32 s{S_KA}, s{S_KA}, 7")
        A(f"s_lshl_b32 s{S_KW}, s{S_KA}, 19")
        A(f"s_sub_u32 s{S_KW}, s{S_KW}, {32*8192}")
        A(f"s_lshl_b32 s{S_KA}, s{S_KA}, 7")
        A(f"s_sub_u32 s{S_KA}, s{S_KA}, 128")
    A(f"s_sub_u32 s{S_T0}, 14, s{S_J}")
    A(f"s_cmp_ge_u32 s{S_WAVE}, 2")
    A(f"s_cselect_b32 s{S_T0}, s{S_T0}, s{S_J}")
    A(f"s_lshl_b32 s{S_T0}, s{S_T0}, 17")
    A(f"s_lshl_b32 s{S_T1}, s{S_H}, 8")
    A("s_waitcnt lgkmcnt(0)")
    stamp(A, True)
    diag_start(A)
    srd(A, R_CKV, P_CKV, 256 * 1024, f"s{S_T0}")
    emit_dma(A, act_dma(0, 0) + act_dma(0, 1))
    A(f"s_cmp_ge_u32 s{S_WAVE}, 2")
    A(f"s_cselect_b32 s{S_T2}, s{P_WUV}, s{P_WUK}")
    A(f"s_cselect_b32 s{S_T3}, s{P_WUV+1}, s{P_WUK+1}")
    srd(A, R_WKV, S_T2, 511 * 8192 + 256, f"s{S_T1}")
    emit_dma(A, w_dma(0) + w_dma(1))

def setup(A):
    A(f"v_and_b32 v{T}, 15, v0")
    A(f"s_and_b32 s{S_T0}, s{S_WAVE}, 1")
    A(f"s_lshl_b32 s{S_T0}, s{S_T0}, 14")
    A(f"v_lshlrev_b32 v{T}, 7, v{T}")
    A(f"v_add_u32 v{T}, s{S_T0}, v{T}")
    A(f"v_lshrrev_b32 v{T+1}, 4, v0")
    A(f"v_and_b32 v{T+2}, 6, v0")
    A(f"v_xor_b32 v{T+1}, v{T+1}, v{T+2}")
    A(f"v_lshl_add_u32 v{V_AADDR}, v{T+1}, 4, v{T}")
    A(f"v_xor_b32 v{V_AADDR+1}, 64, v{V_AADDR}")
    A(f"v_add_u32 v{V_AADDR+2}, {2*ACT_SLOT}, v{V_AADDR}")
    A(f"v_add_u32 v{V_AADDR+3}, {2*ACT_SLOT}, v{V_AADDR+1}")
    A(f"v_lshrrev_b32 v{T}, 4, v0")
    A(f"v_bfe_u32 v{T+1}, v0, 2, 2")
    A(f"v_lshl_add_u32 v{T+2}, v{T}, 3, v{T+1}")
    A(f"v_lshlrev_b32 v{T+4}, 8, v{T+2}")
    A(f"v_bfe_u32 v{T+3}, v0, 2, 3")
    A(f"v_lshl_add_u32 v{T+4}, v{T+3}, 5, v{T+4}")
    A(f"v_and_b32 v{T+3}, 3, v0")
    A(f"v_lshl_add_u32 v{T+4}, v{T+3}, 3, v{T+4}")
    A(f"v_add_u32 v{T+4}, {W_BASE}, v{T+4}")
    A(f"s_lshr_b32 s{S_T0}, s{S_WAVE}, 1")
    A(f"s_lshl_b32 s{S_T0}, s{S_T0}, 7")
    for n in range(4): A(f"v_xor_b32 v{V_WADDR+4+n}, {128 + 32*n}, v{T+4}")
    A(f"v_xor_b32 v{V_WADDR}, s{S_T0}, v{T+4}")
    for n in range(1, 4): A(f"v_xor_b32 v{V_WADDR+n}, {32*n}, v{V_WADDR}")
    A(f"v_lshlrev_b32 v{T+4}, 7, v{T+2}")
    A(f"v_bfe_u32 v{T+5}, v0, 3, 2")
    A(f"v_lshl_add_u32 v{T+4}, v{T+5}, 5, v{T+4}")
    A(f"v_lshl_add_u32 v{T+4}, v{T+3}, 3, v{T+4}")
    A(f"v_add_u32 v{V_W1}, {W_BASE + 8192}, v{T+4}")
    for n in range(1, 4): A(f"v_xor_b32 v{V_W1+n}, {32*n}, v{V_W1}")
    A(f"v_lshlrev_b32 v{V_L16}, 4, v0")
    A(f"v_lshlrev_b32 v{T+8}, 7, v0")
    code_srd(A, R_TMP, "L_main", "L_exit")
    if CPF:
        A(f"v_lshlrev_b32 v{T+9}, 14, v0")
        A(f"s_lshr_b32 s{S_T0}, s2, 3")
        A(f"s_lshl_b32 s{S_T0}, s{S_T0}, 2")
        A(f"s_add_u32 s{S_T0}, s{S_T0}, s{S_WAVE}")
        A(f"s_lshl_b32 s{S_T0}, s{S_T0}, 7")
        A(f"buffer_load_dword a200, v{T+9}, {sr(R_TMP)}, s{S_T0} offen")
    else:
        A(f"s_lshr_b32 s{S_T0}, s2, 3")
        A(f"s_and_b32 s{S_T0}, s{S_T0}, 3")
        A(f"s_lshl_b32 s{S_T0}, s{S_T0}, 2")
        A(f"s_add_u32 s{S_T0}, s{S_T0}, s{S_WAVE}")
        A(f"s_lshl_b32 s{S_T0}, s{S_T0}, 13")
        A(f"buffer_load_dword a200, v{T+8}, {sr(R_TMP)}, s{S_T0} offen")
    emit_dma(A, act_dma(1, 0) + act_dma(1, 1) + w_dma(2))

def late_setup():
    seqs = []
    A = Asm()
    srd(A, R_WS, P_WS, WS_SIZE)
    srd(A, R_CNT, P_DBG, 256)
    A(f"s_mov_b32 s{S_W0}, {BIG}")
    A(f"s_cmp_eq_u32 s{S_WAVE}, 0")
    A(f"s_cselect_b32 s{S_W0}, 0, s{S_W0}")
    A(f"v_cmp_eq_u32 vcc, 0, v0")
    A(f"v_mov_b32 v{V_LANE0}, {BIG}")
    A(f"v_mov_b32 v{T+2}, 0")
    A(f"v_mov_b32 v{T+3}, 0")
    A(f"v_cndmask_b32 v{V_LANE0}, v{V_LANE0}, 0, vcc")
    A(f"v_mov_b32 v{T+4}, 0")
    A(f"v_mov_b32 v{T+5}, 0")
    A(f"s_mul_i32 s{S_T0}, s{S_WAVE}, 6144")
    A(f"s_mov_b32 s{S_Y0}, {BIG}")
    A(f"s_cmp_eq_u32 s2, 0")
    A(f"s_cselect_b32 s{S_T0}, s{S_T0}, s{S_Y0}")
    A(f"s_cselect_b32 s{S_Y0}, s{S_W0}, s{S_Y0}")
    A(f"s_add_u32 s{S_T0}, s{S_T0}, {FLAG_OFF}")
    A(f"s_add_u32 s{S_T1}, s{S_T0}, 3072")
    A("s_cmp_lg_u32 s2, 0")
    A("s_cbranch_scc0 L_clr")
    A("L_clr_ret:")
    srd(A, R_X, P_X, 2048 * 1280)
    srd(A, R_TMP, P_GATE, 1280)
    seqs.append(A.lines); A = Asm()
    A(f"s_sub_u32 s{S_T0}, 14, s{S_J}")
    A(f"s_cmp_lt_u32 s{S_H}, 16")
    A(f"s_cselect_b32 s{S_T0}, s{S_J}, s{S_T0}")
    A(f"s_lshl_b32 s{S_T0}, s{S_T0}, 4")
    A(f"s_add_u32 s{S_T0}, s{S_T0}, s{S_H}")
    A(f"s_lshl_b32 s{S_T0}, s{S_T0}, 2")
    A(f"s_add_u32 s{S_T0}, s{S_T0}, s{S_WAVE}")
    A(f"s_mul_i32 s{S_X0}, s{S_T0}, 2560")
    A(f"s_lshl_b32 s{S_GOFF}, s{S_T0}, 3")
    A(f"s_add_u32 s{S_GOFF}, s{S_GOFF}, {G_OFF}")
    A(f"s_lshl_b32 s{S_T0}, s{S_H}, 8")
    srd(A, R_WQ, P_WQ, 639 * 8192 + 256, f"s{S_T0}")
    A(f"s_and_b32 s{S_F}, s2, 31")
    if FMAP:
        A(f"s_lshr_b32 s{S_T0}, s{S_F}, 1")
        A(f"s_add_u32 s{S_T0}, s{S_T0}, 11")
        A(f"s_mov_b32 s{S_T1}, 0x54000000")
        A(f"s_bitcmp1_b32 s{S_T1}, s{S_F}")
        A(f"s_cselect_b32 s{S_T0}, s{S_T0}, 31")
        A(f"s_cmp_lt_u32 s{S_F}, 24")
        A(f"s_cselect_b32 s{S_F}, s{S_F}, s{S_T0}")
    A(f"s_lshl_b32 s{S_T0}, s{S_F}, 7")
    srd(A, R_W1, P_W1, 639 * 3456 + 128, f"s{S_T0}")
    srd(A, R_KVL, P_B1, 128, f"s{S_T0}")
    A(f"s_cmp_lt_u32 s{S_F}, 27")
    A(f"s_cselect_b32 s{R_W1+2}, s{R_W1+2}, 0")
    A(f"s_cselect_b32 s{R_KVL+2}, s{R_KVL+2}, 0")
    seqs.append(A.lines); A = Asm()
    A(f"v_lshrrev_b32 v{T}, 4, v0")
    A(f"v_lshlrev_b32 v{T}, 3, v{T}")
    for fb in range(4):
        A(tag(f"buffer_load_dwordx2 a[{160+2*fb}:{161+2*fb}], v{T}, {sr(R_KVL)}, 0 offen offset:{32*fb}", "BIAS"))
    A(f"s_lshl_b32 s{S_T0}, s{S_H}, 20")
    srd(A, R_KVL, P_WS, 0, f"s{S_T0}")
    A(f"s_sub_u32 s{S_T1}, 16, s{S_J}")
    A(f"s_lshl_b32 s{R_KVL+2}, s{S_T1}, 16")
    A(f"s_sub_u32 s{S_T1}, 15, s{S_J}")
    A(f"s_bitcmp1_b32 s{S_WAVE}, 0")
    A(f"s_cselect_b32 s{S_T1}, s{S_T1}, s{S_J}")
    A(f"s_lshl_b32 s{S_T1}, s{S_T1}, 16")
    A(f"s_add_u32 s{S_T0}, s{S_T0}, s{S_T1}")
    A(f"s_lshr_b32 s{S_T1}, s{S_WAVE}, 1")
    A(f"s_lshl_b32 s{S_T1}, s{S_T1}, 11")
    A(f"s_add_u32 s{S_KST}, s{S_T0}, s{S_T1}")
    A(f"s_add_u32 s{S_VST}, s{S_KST}, s{S_T1}")
    A(f"s_add_u32 s{S_VST}, s{S_VST}, 8192")
    seqs.append(A.lines); A = Asm()
    A(f"s_cmp_lt_u32 s2, 160")
    A(f"s_cselect_b32 s{S_T2}, s{P_WO}, s{P_W2}")
    A(f"s_cselect_b32 s{S_T3}, s{P_WO+1}, s{P_W2+1}")
    srd(A, R_PKS, S_T2, 4096 * 1280)
    A(f"s_cmp_lt_u32 s2, 160")
    A(f"s_cselect_b32 s{R_PKS+2}, s{R_PKS+2}, {1728 * 1280}")
    A(f"s_lshl_b32 s{S_T0}, s{S_J}, 3")
    A(f"s_sub_u32 s{S_T1}, 120, s{S_T0}")
    A(f"s_sub_u32 s{S_T2}, 7, s{S_WAVE}")
    A(f"s_add_u32 s{S_ROW}, s{S_T0}, s{S_WAVE}")
    A(f"s_add_u32 s{S_ROW+1}, s{S_T0}, s{S_T2}")
    A(f"s_add_u32 s{S_ROW+2}, s{S_T1}, s{S_WAVE}")
    A(f"s_add_u32 s{S_ROW+3}, s{S_T1}, s{S_T2}")
    for q in range(4): A(f"s_mul_i32 s{S_RO+q}, s{S_ROW+q}, {16*1280}")
    A(f"s_lshl_b32 s{S_MW1}, s{S_WAVE}, 10")
    A(f"s_add_u32 s{S_MW1}, s{S_MW1}, {W_BASE + 8192}")
    A(f"s_lshl_b32 s{S_MWQ}, s{S_WAVE}, 11")
    A(f"s_add_u32 s{S_MWQ}, s{S_MWQ}, {W_BASE}")
    seqs.append(A.lines); A = Asm()
    A(f"v_mov_b32 v{T+3}, 1")
    A(f"buffer_store_dword v{T+3}, v{V_LANE0}, {sr(R_CNT)}, s{S_Y0} offen{SC1}")
    A(f"v_lshrrev_b32 v{T}, 3, v0")
    A(f"s_lshl_b32 s{S_T0}, s{S_WAVE}, 3")
    A(f"v_add_u32 v{T}, s{S_T0}, v{T}")
    A(f"v_mul_u32_u24 v{T}, 3456, v{T}")
    A(f"s_and_b32 s{S_T0}, s{S_WAVE}, 1")
    A(f"s_lshl_b32 s{S_T1}, s{S_T0}, 2")
    A(f"v_bfe_u32 v{T+1}, v0, 4, 1")
    A(f"v_lshl_or_b32 v{T+1}, v{T+1}, 1, s{S_T1}")
    A(f"v_and_b32 v{T+2}, 7, v0")
    A(f"v_xor_b32 v{T+1}, v{T+1}, v{T+2}")
    A(f"v_lshl_add_u32 v{V_VOFF1}, v{T+1}, 4, v{T}")
    seqs.append(A.lines); A = Asm()
    for fb in range(4):
        for k in range(2):
            A([f"v_accvgpr_read_b32 v{T+4}, a{160+2*fb+k}", f"v_lshlrev_b32 v{T+5}, 16, v{T+4}", f"v_and_b32 v{T+4}, 0xffff0000, v{T+4}",
               f"v_accvgpr_write_b32 {BIAS.r(4*fb+2*k)}, v{T+5}", f"v_accvgpr_write_b32 {BIAS.r(4*fb+2*k+1)}, v{T+4}"])
    seqs.append(A.lines); A = Asm()
    pre, ld = gate_loads()
    seqs.append(pre + ld)
    fattn.init_consts(A, T)
    seqs.append(A.lines[:50]); seqs.append(A.lines[50:])
    m, red, adr, sto = gate_math()
    seqs.append(m[:49]); seqs.append(m[49:])
    return seqs
TOUCH = int(os.environ.get("TOUCH", "1"))

GX, GW = 168, 180
def gate_loads():
    pre = [f"v_lshrrev_b32 v{T}, 5, v0", f"v_mul_u32_u24 v{T}, 1280, v{T}", f"v_and_b32 v{T+1}, 0x1f0, v{V_L16}", f"v_add_u32 v{T}, v{T}, v{T+1}"]
    ld = []
    for i in range(3):
        ld.append(tag(f"buffer_load_dwordx4 a[{GX+4*i}:{GX+4*i+3}], v{T}, {sr(R_X)}, s{S_X0} offen offset:{512*i}", "GATE"))
        ld.append(tag(f"buffer_load_dwordx4 a[{GW+4*i}:{GW+4*i+3}], v{T+1}, {sr(R_TMP)}, 0 offen offset:{512*i}", "GATE"))
    return pre, ld
def gate_math():
    m = [f"v_mov_b32 v{T}, 0"]
    for i in range(12):
        m += [f"v_accvgpr_read_b32 v{T+1}, a{GX+i}", f"v_accvgpr_read_b32 v{T+2}, a{GW+i}",
              f"v_lshlrev_b32 v{T+3}, 16, v{T+1}", f"v_lshlrev_b32 v{T+4}, 16, v{T+2}",
              f"v_and_b32 v{T+1}, 0xffff0000, v{T+1}", f"v_and_b32 v{T+2}, 0xffff0000, v{T+2}",
              f"v_fmac_f32 v{T}, v{T+3}, v{T+4}", f"v_fmac_f32 v{T}, v{T+1}, v{T+2}"]
    red = [f"v_add_f32_dpp v{T}, v{T}, v{T} quad_perm:[1,0,3,2] row_mask:0xf bank_mask:0xf",
           f"v_add_f32_dpp v{T}, v{T}, v{T} quad_perm:[2,3,0,1] row_mask:0xf bank_mask:0xf",
           f"v_add_f32_dpp v{T}, v{T}, v{T} row_half_mirror row_mask:0xf bank_mask:0xf",
           f"v_add_f32_dpp v{T}, v{T}, v{T} row_mirror row_mask:0xf bank_mask:0xf",
           f"v_add_f32_dpp v{T}, v{T}, v{T} row_bcast:15 row_mask:0xa bank_mask:0xf",
           f"v_mul_f32 v{T}, 0xbfb8aa3b, v{T}", f"v_exp_f32 v{T}, v{T}", f"v_add_f32 v{T}, 1.0, v{T}", f"v_rcp_f32 v{T}, v{T}"]
    adr = [f"v_add_u32 v{T+1}, 1, v0", f"v_lshlrev_b32 v{T+1}, 27, v{T+1}", f"v_lshrrev_b32 v{T+1}, 1, v{T+1}",
           f"v_lshrrev_b32 v{T+2}, 5, v0", f"v_lshl_add_u32 v{T+1}, v{T+2}, 2, v{T+1}"]
    st = f"buffer_store_dword v{T}, v{T+1}, {sr(R_WS)}, s{S_GOFF} offen{SC1}"
    return m, red, adr, st

PKO = R_CKV
def pack_offsets():
    seq = [f"s_lshl_b32 s{S_T2}, s2, 2", f"s_sub_u32 s{S_T3}, s{S_T2}, 640", (f"s_cmp_lt_u32 s2, 160", f"s_cselect_b32 s{S_T2}, s{S_T2}, s{S_T3}")]
    for i in range(4):
        if i: seq.append(f"s_add_u32 s{S_T2}, s{S_T2}, 1")
        seq += [f"s_mul_i32 s{S_T3}, s{S_T2}, 52429", f"s_lshr_b32 s{S_T3}, s{S_T3}, 18", f"s_mul_i32 s{S_T3}, s{S_T3}, {40960 - 1280}",
                f"s_lshl_b32 s{PKO+i}, s{S_T2}, 8", f"s_add_u32 s{PKO+i}, s{PKO+i}, s{S_T3}"]
    return seq
PKS = [int(x) for x in os.environ.get("PKS", "0,1,2,3,4,5,6").split(",")]
def pack_dma():
    return [([f"s_add_u32 m0, s{S_MWQ}, {PACK_LDS - W_BASE + cc*8192}"],
             tag(f"buffer_load_dwordx4 v{V_PK+e}, {sr(R_PKS)}, s{PKO+cc} offen offset:{e*1024}{NT(2)} lds", "PK")) for cc in range(4) for e in range(2)]
V_PK = 2
def early_B(): return pack_dma()[PKS[6]:]
def pack_pre():
    return [f"v_lshrrev_b32 v{T+2}, 4, v0", f"v_lshlrev_b32 v{T+3}, 1, v{T+2}", f"v_and_b32 v{T+4}, 15, v0", f"v_xor_b32 v{T+3}, v{T+3}, v{T+4}",
            f"s_lshl_b32 s{S_T0}, s{S_WAVE}, 3", f"v_add_u32 v{T+2}, s{S_T0}, v{T+2}", f"v_mul_u32_u24 v{T+2}, 1280, v{T+2}",
            f"v_lshl_add_u32 v{V_PK}, v{T+3}, 4, v{T+2}", f"v_xor_b32 v{T+3}, 8, v{T+3}", f"v_lshl_add_u32 v{V_PK+1}, v{T+3}, 4, v{T+2}", f"v_add_u32 v{V_PK+1}, {4*1280 - 1024}, v{V_PK+1}"]
PKD = Reg("a", 128)
def pack_read_pre():
    return [f"v_lshrrev_b32 v12, 2, v0", f"v_and_b32 v13, 7, v12", f"s_lshl_b32 s{S_T0}, s{S_WAVE}, 1", f"v_xor_b32 v13, s{S_T0}, v13",
            f"v_lshlrev_b32 v12, 8, v12", f"v_lshl_add_u32 v12, v13, 5, v12", f"v_and_b32 v13, 3, v0",
            f"v_lshl_add_u32 v12, v13, 3, v12", f"v_add_u32 v12, {PACK_LDS}, v12", f"v_xor_b32 v13, 32, v12"]
def pack_dst():
    return [
            f"s_lshl_b32 s{S_T2}, s2, 15", f"s_add_u32 s{S_T2}, s{S_T2}, s{S_MWQ}", f"s_add_u32 s{PKO}, s{S_T2}, {WOP_OFF - W_BASE}",
            (f"s_cmp_lt_u32 s2, 228", f"s_cselect_b32 s{PKO}, s{PKO}, {BIG}"), f"s_add_u32 s{PKO+1}, s{PKO}, 8192", f"s_add_u32 s{PKO+2}, s{PKO}, 16384",
            (f"s_cmp_lt_u32 s2, 227", f"s_cselect_b32 s{PKO+2}, s{PKO+2}, {BIG}"), f"s_add_u32 s{PKO+3}, s{PKO+2}, 8192"]
def pack_reads():
    return [f"ds_read_b64_tr_b16 {PKD.r(8*cc + 4*e + 2*sec, 2)}, v{12+e} offset:{cc*8192 + sec*4096}" for cc in range(4) for e in range(2) for sec in range(2)]
def pack_stores():
    return [tag(f"buffer_store_dwordx4 {PKD.r(8*cc + 4*e, 4)}, v{V_L16}, {sr(R_WS)}, s{PKO+cc} offen offset:{e*1024}{SC1}", "MID") for cc in range(4) for e in range(2)]

def lanes_below(n):
    return [f"v_sub_u32 v{T+7}, {n-1}, v0", f"v_and_b32 v{T+7}, {BIG}, v{T+7}", f"v_or_b32 v{T+9}, v{T+9}, v{T+7}"]

def main(A, OOL):
    OOL.label("L_clr")
    for i in range(6): OOL(f"buffer_store_dwordx4 v[{T+2}:{T+5}], v{V_L16}, {sr(R_WS)}, s{S_T0 + i//3} offen offset:{(i%3)*1024}{SC1}")
    OOL("s_branch L_clr_ret")
    A.label("L_main")
    A("s_waitvm A0,W0")
    A("s_barrier")
    stamp(A)
    A(reads(0))
    pend_cvt = []
    nxt_store = 4
    tot = 0
    late = late_setup()
    for st in range(NST):
        S = Sched(mfmas_a(st) if st < NA else mfmas_b(st))
        n = len(S.mf)
        dm = []
        if st + 4 < NST: dm += w_dma(st + 4)
        if st == 0: dm = w_dma(3) + act_dma(2, 0) + act_dma(2, 1) + dm
        else:
            t = (st - 1) // 2 + 3
            if t < NST // 2: dm += act_dma(t, (st - 1) % 2)
        if st == 32: dm += fattn.unit_dma(0)[:5]
        if st == 33: dm += fattn.unit_dma(0)[5:] + fattn.k0_dma()
        if st >= 34: dm += pack_dma()[PKS[st - 34]:PKS[st - 33]]
        last = st + 1 == NST
        if not last:
            tags = f"W{st+1},A{(st+1)//2}"
            if st == 5: tags += ",BIAS"
            if st == 9: tags += ",GATE"
            if st == KV_PUB: tags += ",KV"
            S.put_s(f"s_waitvm {tags}", 0)
        S.put_s("s_barrier", 1)
        if st >= KV_FIRST and nxt_store < 32:
            cnt = min(KV_RATE, 32 - nxt_store)
            for i in range(cnt):
                dm.insert((i + 1) * (len(dm) + cnt - i) // cnt - 1 if KV_MIX else len(dm), kv_store(nxt_store, cell(nxt_store, 0))); nxt_store += 1
        j = 2
        for i, (sc, ld) in enumerate(dm): j = S.put_m(ld, max(j, 2 + i * int(n * DSPAN) // len(dm)), sc) + 1
        if TOUCH & 1:
            for half in range(2):
                k = 2 * (st - T0) + half
                if not 0 <= k < 20: continue
                seq = []
                jw = [f"s_lshl_b32 s{S_SOF3}, s{S_J}, 2", f"s_add_u32 s{S_SOF3}, s{S_SOF3}, s{S_WAVE}"]
                if k == 0:
                    seq = [f"v_lshlrev_b32 v{T+9}, 7, v0"] + lanes_below(4) + [f"s_mov_b32 s{S_SOF3}, s{S_X0}"]
                elif k == 5:
                    seq = [f"v_lshrrev_b32 v{T+9}, 1, v0", f"v_lshlrev_b32 v{T+9}, 13, v{T+9}", f"v_and_b32 v{T+7}, 1, v0", f"v_lshl_add_u32 v{T+9}, v{T+7}, 7, v{T+9}"] + lanes_below(4)
                    seq += jw + [f"s_mul_i32 s{S_SOF3}, s{S_SOF3}, {20*8192}"]
                elif k == 15:
                    seq = [f"v_mul_u32_u24 v{T+9}, 3456, v0"] + lanes_below(4) + jw + [f"s_mul_i32 s{S_SOF3}, s{S_SOF3}, {20*3456}"]
                else: seq = [f"s_add_u32 s{S_SOF3}, s{S_SOF3}, {512 if k < 5 else (2*8192 if k < 15 else 4*3456)}"]
                jj = S.put_seq(seq + [f"buffer_load_dword a200, v{T+9}, {sr(R_X if k < 5 else (R_WQ if k < 15 else R_W1))}, s{S_SOF3} offen"], 6 + 30 * half)
                assert jj < (36 if half == 0 else n), (st, jj)
        lastread = 2
        if not last:
            rd = reads(st + 1)
            span = int(n * 0.78) - 2
            for i, x in enumerate(rd): lastread = S.put_m(x, max(lastread, 2 + i * span // len(rd)))
        if st == NA:
            jj = 0
            print("  pending cvt", len(pend_cvt))
            for pr, x in pend_cvt:
                jj = S.put_v(x, jj, 3)
                assert jj < 20 + (pr - 4), (jj, pr)
        if st < len(late): S.put_seq(group_scc(late[st]), 2)
        if st == 12:
            _, red, adr, sto = gate_math()
            jj = 2
            for x in red: jj = S.put_v(x, jj) + 2
            jj = S.put_seq(adr, jj)
            S.put_m(tag(sto, "MID"), jj + 1)
        ipoll = f"buffer_load_dword v{T+6}, v{V_LANE0}, {sr(R_CNT)}, 0 offen{SC1}"
        if st == 11: S.put_m(tag(ipoll, "IPOLL"), 4)
        if st == 14:
            A("s_waitvm IPOLL")
            spin_wait(A, OOL, "L_init", ipoll, [f"v_readfirstlane_b32 s{S_T0}, v{T+6}", f"s_cmp_eq_u32 s{S_T0}, 1"])
        if st == 10:
            S.put_seq([f"s_lshl_b32 s{S_T0}, s{S_WAVE}, 16", f"v_lshrrev_b32 v{T+5}, 3, v0", f"v_lshlrev_b32 v{T+5}, 8, v{T+5}", f"v_subrev_u32 v{T+5}, s{S_T0}, v{T+5}"], 2)
            S.put_v(f"v_add_u32 v{V_VOFFA}, v{V_VOFFA}, v{T+5}", j)
        if st == 11:
            S.put_seq([f"s_lshr_b32 s{S_T0}, s{S_WAVE}, 1", f"s_lshl_b32 s{S_T0}, s{S_T0}, 17"], 2)
            S.put_v(f"v_add_u32 v{V_VOFFW}, s{S_T0}, v{V_VOFFW}", j)
        if st == 14:
            S.put_seq([f"s_and_b32 s{S_T0}, s{S_WAVE}, 1", f"s_lshl_b32 s{S_T0}, s{S_T0}, 14", f"s_sub_u32 s{S_T0}, s{S_MA}, s{S_T0}"], 2)
            jj = lastread
            for k in range(4): jj = S.put_v(f"v_add_u32 v{V_AADDR+k}, s{S_T0}, v{V_AADDR+k}", jj)
            for k in range(4): jj = S.put_v(f"v_xor_b32 v{V_WADDR+k}, 128, v{V_WADDR+4+k}", jj)
        if st == NA - 1:
            jj = 0
            for pr in range(32):
                lo = 2 * pr + 1 + 4
                if pr < 4:
                    tmp = Reg("v", T + 2)
                    seq = [f"v_accvgpr_read_b32 {tmp.r(k)}, a{128 + 8*pr + k}" for k in range(8)] + pack4(tmp, tmp, tmp + 4)
                    jj = S.put_seq(seq, max(jj, lo), cap=CVT_CAP)
                    sc, sto = kv_store(pr, tmp)
                    jj = S.put_m(sto, jj + 1, sc) + 2
                    if pr == 3: jj = 0
                else:
                    for x in pack4(cell(pr, 0), cell(pr, 0), cell(pr, 1)):
                        k = max(jj, lo)
                        while k < n and S.used(k) >= CVT_CAP: k += 1
                        if k < n and not pend_cvt: jj = S.put_v(x, k, CVT_CAP)
                        else: pend_cvt.append((pr, x))
        if st == 11: S.put_seq(pack_offsets(), 6)
        if st == KV_PUB - 1:
            S.put_seq([f"s_lshl_b32 s{S_SOF3}, s{S_H}, 7", f"s_add_u32 s{S_SOF3}, s{S_SOF3}, {FLAG_OFF}", f"s_add_u32 s{S_T1}, s{S_SOF3}, s{S_W0}", f"v_mov_b32 v{T+5}, 1"], 2)
        if st == KV_PUB:
            assert nxt_store == 32
            S.put_m(f"buffer_atomic_add v{T+5}, v{V_LANE0}, {sr(R_WS)}, s{S_T1} offen{SC1}", 2)
        if st >= NA:
            jj = 0
            for i, (kind, qb, b) in enumerate(order_b(st)):
                if home(kind, qb, b, st).kind == "a" and home(kind, qb, b, st + 1).kind == "v":
                    for k in range(4):
                        jj = S.put_v(f"v_accvgpr_read_b32 {home(kind, qb, b, st+1).r(k)}, {home(kind, qb, b, st).r(k)}", max(jj, i + 5))
        if st == 32: S.put_seq(pack_pre(), 2)
        if st == 19: S.put_seq(fout.setup_seqs()[0], 2)
        if st == 20: S.put_seq(fout.setup_seqs()[1], 2)
        if st == 33: S.put_seq(fout.setup_seqs()[2], 2)
        if st == 31: S.put_seq(fattn.prologue_scalars(), 2)
        if last:
            j = S.put_seq(fattn.init_regs() + pack_read_pre() + [f"v_add_u32 v14, {fattn.K0_LDS}, v{V_L16}"], 2)
            S.put_s(f"s_load_dword s{fout.S_POLL}, s[{P_WS}:{P_WS+1}], s{S_SOF3} glc", POLL_GAP)
        A("s_waitcnt lgkmcnt(0)")
        diag_hold(A, f"s{st}")
        if st in (4, 16, 31): stamp(A)
        elif st in (1, 2, 3, 6, 8, 12): stamp(A, grp='s')
        A(S.emit())
        tot += S.cost()
        if S.cost() > 16 * n: print(f"  step {st}: est {S.cost()} cycles for {n} mfma, tail {len(S.tail)}")
    stamp(A)
    print("projection est cycles", tot)

KV_RATE = int(os.environ.get("KV_RATE", "2"))
KV_PUB = int(os.environ.get("KV_PUB", "31"))
CVT_CAP = 3
T0 = int(os.environ.get('T0', '2'))
CPF = int(os.environ.get('CPF', '1'))
KV_MIX = int(os.environ.get('KV_MIX', '1'))
KV_FIRST = int(os.environ.get('KV_FIRST', '16'))
DSPAN = float(os.environ.get('DSPAN', '0.9'))

QDST = 176
POLL_GAP = int(os.environ.get("POLL_GAP", "10"))
def extra_B(R):
    j = R.seq(0, fattn.ctx_offsets() + fout.pre(), 0)
    assert R.S.put_seq(pack_dst(), max(j + 1, R.g0[4])) < R.g0[11]
    R.bar(PK_G, "s_waitvm PK")
    j = R.g0[PK_G] + 1
    for x in pack_reads():
        while len(R.S.g[j]["m"]) > 1 or R.S.hasvm(j) or R.S.used(j) > 2 or any(is_trans(y) for y in R.S.g[j]["v"]): j += 1
        R.S.g[j]["m"].insert(0, x)
    assert j < R.g0[11], (j, R.g0)
    R.mem(11, pack_stores(), 4, off=0)
PK_G = 9

def epilogue(A, OOL):
    c0 = -2.0 * math.sqrt(2.0 / math.pi) * math.log2(math.e)
    c1 = c0 * 0.044715
    A(f"s_mov_b32 s{S_T0}, {f2u(c1)}"); A(f"s_mov_b32 s{S_T1}, {f2u(c1)}")
    A(f"v_mov_b32 v{T}, {f2u(c0)}"); A(f"v_mov_b32 v{T+1}, {f2u(c0)}")
    A(f"s_lshl_b32 s{S_T2}, s{S_F}, 13")
    A(f"s_add_u32 s{S_T2}, s{S_T2}, {H_OFF}")
    A(f"s_cmp_lt_u32 s{S_F}, 27")
    A(f"s_cselect_b32 s{S_T2}, s{S_T2}, {BIG}")
    def hstore(q):
        x = acch_final(q, 0)
        return [f"s_lshr_b32 s{S_Y1}, s{S_ROW+q}, 2", f"s_mul_i32 s{S_Y1}, s{S_Y1}, {54*4096}", f"s_and_b32 s{S_SOFF}, s{S_ROW+q}, 3",
                f"s_lshl_b32 s{S_SOFF}, s{S_SOFF}, 10", f"s_add_u32 s{S_Y1}, s{S_Y1}, s{S_SOFF}", f"s_add_u32 s{S_Y1}, s{S_Y1}, s{S_T2}",
                f"s_add_u32 s{S_SOFF}, s{S_Y1}, 4096",
                tag(f"buffer_store_dwordx4 {x.r(0,4)}, v{V_L16}, {sr(R_WS)}, s{S_Y1} offen{SC1}", "MID"),
                tag(f"buffer_store_dwordx4 {x.r(4,4)}, v{V_L16}, {sr(R_WS)}, s{S_SOFF} offen{SC1}", "MID")]
    G = 160
    vpoll = [f"buffer_load_dword v{T+7}, v{V_LANE0}, {sr(R_WS)}, s{S_SOF3} offen{SC1}", "s_waitcnt vmcnt(0)", f"v_readfirstlane_b32 s{fout.S_POLL}, v{T+7}"]
    side = []
    for qb in range(4):
        x = acch_final(qb, 0)
        if qb == 1:
            A("s_waitcnt lgkmcnt(0)")
            spin_wait(A, OOL, "L_kv", vpoll, [f"s_cmp_ge_u32 s{fout.S_POLL}, 8"])
            stamp(A)
            for sc_, ld in fattn.unit_dma(1): side += sc_ + [ld, None, None]
        for sc_, ld in pack_dma()[PKS[2 + qb]:PKS[3 + qb]]: side += sc_ + [ld]
        if qb == 2: side += hstore(0) + hstore(1)
        if qb == 3: side += hstore(2) + hstore(3)[:7]
        for k in range(0, 16, 2): A(f"v_pk_mul_f32 v[{G+k}:{G+k+1}], {x.r(k,2)}, {x.r(k,2)}")
        for k in range(0, 16, 2): A(f"v_pk_fma_f32 v[{G+k}:{G+k+1}], v[{G+k}:{G+k+1}], s[{S_T0}:{S_T1}], v[{T}:{T+1}]")
        for k in range(0, 16, 2): A(f"v_pk_mul_f32 v[{G+k}:{G+k+1}], v[{G+k}:{G+k+1}], {x.r(k,2)}")
        for k in range(16):
            A(f"v_exp_f32 v{G+k}, v{G+k}")
            if side: A(side.pop(0) or [])
        for k in range(0, 16, 2): A(f"v_pk_add_f32 v[{G+k}:{G+k+1}], v[{G+k}:{G+k+1}], 1.0 op_sel_hi:[1,0]")
        for k in range(16):
            A(f"v_rcp_f32 v{G+k}, v{G+k}")
            if side: A(side.pop(0) or [])
        for k in range(0, 16, 2): A(f"v_pk_mul_f32 v[{G+k}:{G+k+1}], v[{G+k}:{G+k+1}], {x.r(k,2)}")
        for k in range(8): A(f"v_cvt_pk_bf16_f32 {x.r(k)}, v{G+2*k}, v{G+2*k+1}")
    assert not side
    A(f"s_mov_b32 s{S_T2}, {f2u(math.log2(math.e) / math.sqrt(128.0))}")
    A(f"s_mov_b32 s{S_T3}, s{S_T2}")
    A(hstore(3)[7:])
    for qb in range(4):
        x = accq_final(qb, 0)
        if qb == 3:
            A("s_waitvm R0")
            A("s_barrier")
            A(fattn.k0_reads(14))
        for k in range(0, 32, 2): A(f"v_pk_mul_f32 {x.r(k,2)}, {x.r(k,2)}, s[{S_T2}:{S_T3}]")
        for k in range(16): A(f"v_cvt_pk_bf16_f32 v{QDST+16*qb+k}, {x.r(2*k)}, {x.r(2*k+1)}")
```

```python
import sys
from fcommon import *
import fproj, fattn, fout
KN = "gated_mix__compressed_kv_cla__dense_activation_gelu__prompt_kernel"
HDR = open("gated_mix__compressed_kv_cla__dense_activation_gelu__prompt.s.ref").read().split("; Override launch")[0]
def build():
    A, OOL = Asm(), Asm()
    fproj.entry(A)
    fproj.setup(A)
    fproj.main(A, OOL)
    fproj.epilogue(A, OOL)
    stamp(A)
    paths = []
    rd0, rd1 = fattn.main(A, OOL, paths, fproj.extra_B, fproj.early_B(), fout.extra_D)
    B = Asm()
    stamp(B)
    diag_hold(B, 'att')
    B("s_nop 3")
    fattn.epilogue(B, OOL, fout.early())
    stamp(B)
    fout.body(B, OOL)
    diag_hold(B, 'end')
    stamp_flush(B)
    B("s_endpgm")
    fake = ["buffer_fake ;@PRE"]
    t0 = resolve_waits(fake + rd0 + B.lines)[1:]; t1 = resolve_waits(fake + rd1 + B.lines)[1:]
    rd0, rd1, tail = t0[:len(rd0)], t1[:len(rd1)], t0[len(rd0):]
    assert tail == t1[len(rd1):]
    np_ = 0
    for i, p in enumerate(paths): np_ += len(check_stream(p + (rd0 if i < len(paths) // 2 else rd1) + ["s_branch x"] + tail, "main"))
    np_ += len(check_stream(OOL.lines + OOL.lines, "ool"))
    A("s_cbranch_scc1 L_att_D1")
    A(rd0); A("s_branch L_att_D2")
    A.label("L_att_D1"); A(rd1)
    A.label("L_att_D2")
    A(tail); A(OOL.lines)
    A.label("L_exit")
    A("s_endpgm")
    txt = HDR + '; @launch grid=(256,1,1) block=(256,1,1) lds=163840\n.amdgcn_target "amdgcn-amd-amdhsa--gfx950"\n'
    txt += f".text\n.globl {KN}\n.p2align 8\n.type {KN},@function\n{KN}:\n" + "\n".join(A.lines) + "\n"
    txt += f""".section .rodata,"a"
.p2align 6
.amdhsa_kernel {KN}
  .amdhsa_next_free_vgpr 512
  .amdhsa_next_free_sgpr 102
  .amdhsa_accum_offset 256
  .amdhsa_group_segment_fixed_size 0
  .amdhsa_kernarg_size 120
  .amdhsa_user_sgpr_count 2
  .amdhsa_user_sgpr_kernarg_segment_ptr 1
  .amdhsa_system_sgpr_workgroup_id_x 1
  .amdhsa_float_denorm_mode_32 3
  .amdhsa_float_denorm_mode_16_64 3
.end_amdhsa_kernel
"""
    return txt, np_
if __name__ == "__main__":
    txt, n = build()
    open(sys.argv[1], "w").write(txt)
    print("problems:", n, "bytes:", len(txt))
```
